```python
import torch

def _softmax(x, axis=-1):
    return torch.softmax(x, dim=axis)
def _gelu(x):
    return torch.nn.functional.gelu(x, approximate="tanh")
def _silu(x):
    return torch.nn.functional.silu(x)
def _sigmoid(x):
    return torch.sigmoid(x)
def _layernorm(x, axis=-1, eps=1e-5):
    m = x.mean(dim=axis, keepdim=True)
    v = x.var(dim=axis, keepdim=True, unbiased=False)
    return (x - m) / torch.sqrt(v + eps)
def _scatter_add(tgt, idx, src, axis=0):
    return tgt.clone().index_add_(axis, idx, src)
def _segment_sum(src, seg, n):
    out = torch.zeros((n,) + src.shape[1:], dtype=src.dtype)
    return out.index_add_(0, seg, src)
def _pad(x, pw):
    flat = tuple(v for pair in reversed(pw) for v in pair)
    return torch.nn.functional.pad(x, flat)

kernel_name = 'standalone__edge_featured_mpnn_mpnn__graph'

def setup_inputs():

    _w = (lambda a: (lambda t: t.to(torch.bfloat16) if t.is_floating_point() else t)(torch.as_tensor(a)))
    N, deg, D, De = 50000, 16, 64, max(16, 1)
    E = N * deg
    H = 2 * D
    return {
        "x": _w((lambda *s: torch.randn(*s, dtype=torch.bfloat16) * 0.05)(N, D)),
        "e_attr": _w((lambda *s: torch.randn(*s, dtype=torch.bfloat16) * 0.8)(E, De)),
        "src": _w((lambda lo, hi, *s: torch.randint(lo, hi, s))(0, N, E).to(torch.int64)),
        "dst": _w((lambda lo, hi, *s: torch.randint(lo, hi, s))(0, N, E).to(torch.int64)),
        "w1": _w((lambda *s: torch.randn(*s, dtype=torch.bfloat16) * 0.8)(2 * D + De, H) * (1.0 / (2 * D + De) ** 0.5)),
        "b1": _w((lambda *s: torch.randn(*s, dtype=torch.bfloat16) * 0.8)(H) * 0.01),
        "w2": _w((lambda *s: torch.randn(*s, dtype=torch.bfloat16) * 0.05)(H, D) * (1.0 / H ** 0.5)),
        "b2": _w((lambda *s: torch.randn(*s, dtype=torch.bfloat16) * 0.05)(D) * 0.01),
    }

def reference(x, e_attr, src, dst, w1, b1, w2, b2):
    N, D = x.shape
    h_src = x[src]
    h_dst = x[dst]
    m_in = torch.concatenate([h_src, h_dst, e_attr], axis=-1)
    h = _silu(m_in @ w1 + b1)
    msg = h @ w2 + b2
    return _segment_sum(msg, dst, N)
```

```python
class Asm:
    def __init__(self):
        self.lines = []
    def __call__(self, s=""):
        for l in s.split("\n"):
            l = l.strip()
            if not l: continue
            if l.endswith(":") or l.startswith("."):
                self.lines.append(l)
            else:
                self.lines.append("    " + l)
    def text(self):
        return "\n".join(self.lines) + "\n"

def vr(a, n=1, p="v"):
    return f"{p}{a}" if n == 1 else f"{p}[{a}:{a+n-1}]"
def ar(a, n=1): return vr(a, n, "a")
def sr(a, n=1): return vr(a, n, "s")

def kernel_begin(A, name):
    A(f".globl {name}\n.p2align 8\n.type {name},@function\n{name}:")

def descriptor(name, vgpr, sgpr, accum=None):
    if accum is None: accum = (vgpr + 3) // 4 * 4
    return f""".p2align 6
.amdhsa_kernel {name}
  .amdhsa_next_free_vgpr {vgpr}
  .amdhsa_next_free_sgpr {sgpr}
  .amdhsa_accum_offset {accum}
  .amdhsa_group_segment_fixed_size 0
  .amdhsa_kernarg_size 88
  .amdhsa_user_sgpr_count 2
  .amdhsa_user_sgpr_kernarg_segment_ptr 1
  .amdhsa_system_sgpr_workgroup_id_x 1
.end_amdhsa_kernel
"""

HEADER = """; Kernarg layout (88 bytes, ptrs only, base s[0:1]):
"""

def srd(A, d, b, nbytes, off=0):
    if off:
        A(f"s_add_u32 s{d}, s{b}, {off}\ns_addc_u32 s{d+1}, s{b+1}, 0")
    else:
        if d != b:
            A(f"s_mov_b32 s{d}, s{b}\ns_mov_b32 s{d+1}, s{b+1}")
    A(f"s_mov_b32 s{d+2}, {nbytes}\ns_mov_b32 s{d+3}, 0x00020000")
```

```python
import sys
from asmlib import *
N, E = 50000, 800000
ACC_OFF = 1 << 20
LOG2E = 0x3fb8aa3b
def gen(probes="", probe_launch="", probe_desc="", fold=False):
    A = Asm()
    A('.amdgcn_target "amdgcn-amd-amdhsa--gfx950"\n.text')
    kernel_begin(A, "k0_kernel")
    A("""s_load_dwordx2 s[4:5], s[0:1], 80
    s_load_dwordx2 s[6:7], s[0:1], 32
    s_load_dwordx2 s[20:21], s[0:1], 48
    s_waitcnt lgkmcnt(0)""")
    srd(A, 8, 4, N*256, ACC_OFF)
    srd(A, 12, 6, 144*128*2)
    srd(A, 16, 4, 65536)
    srd(A, 24, 20, 128*64*2)
    A("""s_lshl_b32 s3, s2, 12
    v_lshlrev_b32 v1, 4, v0
    v_add_u32 v1, s3, v1
    v_mov_b32 v4, 0
    v_mov_b32 v5, 0
    v_mov_b32 v6, 0
    v_mov_b32 v7, 0
    buffer_store_dwordx4 v[4:7], v1, s[8:11], 0 offen
    s_cmp_ge_u32 s2, 13
    s_cbranch_scc1 k0_done
    v_lshrrev_b32 v2, 6, v0
    v_and_b32 v3, 63, v0
    s_nop 0
    v_readfirstlane_b32 s28, v2
    s_lshl_b32 s29, s2, 2
    s_add_u32 s28, s28, s29
    v_and_b32 v8, 31, v3
    v_lshrrev_b32 v9, 5, v3
    s_cmp_ge_u32 s28, 36
    s_cbranch_scc1 k0_w2
    s_lshr_b32 s30, s28, 2
    s_and_b32 s31, s28, 3
    s_lshl_b32 s30, s30, 12
    s_lshl_b32 s31, s31, 6
    s_add_u32 s30, s30, s31
    v_lshlrev_b32 v10, 11, v9
    v_lshl_add_u32 v10, v8, 1, v10
    v_add_u32 v10, s30, v10""")
    for i in range(8):
        A(f"buffer_load_ushort v{12+i}, v10, s[12:15], 0 offen offset:{i*256}")
    if fold:
        A("s_waitcnt vmcnt(0)")
        A(f"s_mov_b32 s33, {LOG2E | 0x80000000}")
        for i in range(8):
            A(f"v_lshlrev_b32 v{12+i}, 16, v{12+i}\nv_mul_f32 v{12+i}, s33, v{12+i}")
        for i in range(4):
            A(f"v_cvt_pk_bf16_f32 v{20+i}, v{12+2*i}, v{13+2*i}")
        A("s_branch k0_st")
    else:
        A("s_branch k0_pack")
    A("""k0_w2:
    s_sub_u32 s30, s28, 36
    s_lshr_b32 s31, s30, 1
    s_lshl_b32 s31, s31, 11
    s_and_b32 s30, s30, 1
    s_lshl_b32 s30, s30, 6
    s_add_u32 s30, s30, s31
    v_lshlrev_b32 v10, 9, v9
    v_lshl_add_u32 v10, v8, 1, v10
    v_add_u32 v10, s30, v10""")
    for i in range(8):
        A(f"buffer_load_ushort v{12+i}, v10, s[24:27], 0 offen offset:{(8*(i>>2)+(i&3))*128}")
    A("k0_pack:\ns_waitcnt vmcnt(0)")
    for i in range(4):
        A(f"v_lshl_or_b32 v{20+i}, v{13+2*i}, 16, v{12+2*i}")
    A("""k0_st:
    s_lshl_b32 s28, s28, 10
    v_lshlrev_b32 v10, 4, v3
    v_add_u32 v10, s28, v10
    buffer_store_dwordx4 v[20:23], v10, s[16:19], 0 offen
k0_done:
    s_endpgm""")
    kernel_begin(A, "k1_kernel")
    A("""s_cmp_ge_u32 s2, 256
    s_cbranch_scc1 k1_done
    s_load_dwordx4 s[4:7], s[0:1], 0
    s_load_dwordx4 s[8:11], s[0:1], 16
    s_load_dwordx2 s[12:13], s[0:1], 40
    s_load_dwordx2 s[14:15], s[0:1], 56
    s_load_dwordx2 s[16:17], s[0:1], 80
    s_waitcnt lgkmcnt(0)""")
    srd(A, 20, 4, N*128)
    srd(A, 24, 6, E*32)
    srd(A, 28, 8, E*4)
    srd(A, 32, 10, E*4)
    srd(A, 36, 12, 256)
    srd(A, 40, 14, 128)
    srd(A, 44, 16, 65536)
    srd(A, 48, 16, N*256, ACC_OFF)
    A("""v_and_b32 v1, 63, v0
    v_lshrrev_b32 v2, 6, v0
    v_and_b32 v3, 31, v0
    v_bfe_u32 v4, v0, 5, 1
    v_readfirstlane_b32 s52, v2
    v_lshlrev_b32 v5, 4, v1""")
    for j in range(52):
        A(f"s_mov_b32 s53, {j*1024}\nbuffer_load_dwordx4 a[{4*j}:{4*j+3}], v5, s[44:47], s53 offen")
        if j % 16 == 15: A("s_waitcnt vmcnt(0)")
    A("v_lshlrev_b32 v6, 3, v4")
    for t in range(4):
        for r in range(16):
            A(f"buffer_load_ushort v{128+16*t+r}, v6, s[36:39], 0 offen offset:{2*(32*t+8*(r>>2)+(r&3))}")
        A("s_waitcnt vmcnt(0)")
    A(f"s_mov_b32 s60, {LOG2E | 0x80000000}")
    A(f"s_mov_b32 s61, 0xbf317218")
    for i in range(64):
        A(f"v_lshlrev_b32 v{128+i}, 16, v{128+i}")
        if fold: A(f"v_mul_f32 v{128+i}, s60, v{128+i}")
    A("""v_lshlrev_b32 v6, 1, v3
    buffer_load_ushort v8, v6, s[40:43], 0 offen
    buffer_load_ushort v9, v6, s[40:43], 0 offen offset:64
    s_waitcnt vmcnt(0)
    v_lshlrev_b32 v8, 16, v8
    v_lshlrev_b32 v9, 16, v9
    s_lshl_b32 s54, s2, 2
    s_add_u32 s54, s54, s52
k1_loop:
    s_lshl_b32 s55, s54, 7        ; tile*32*4
    v_lshlrev_b32 v6, 2, v3
    buffer_load_dword v10, v6, s[28:31], s55 offen
    buffer_load_dword v11, v6, s[32:35], s55 offen
    v_lshlrev_b32 v7, 4, v4""")
    for q in range(4):
        A(f"buffer_load_dwordx4 v[{16+4*q}:{19+4*q}], v7, s[32:35], s55 offen offset:{32*q}")
    A("""s_lshl_b32 s56, s54, 10
    v_lshlrev_b32 v12, 5, v3
    v_lshl_add_u32 v12, v4, 4, v12
    buffer_load_dwordx4 v[64:67], v12, s[24:27], s56 offen
    s_waitcnt vmcnt(0)
    v_lshlrev_b32 v10, 7, v10
    v_lshlrev_b32 v11, 7, v11
    v_lshl_add_u32 v10, v4, 4, v10
    v_lshl_add_u32 v11, v4, 4, v11""")
    for s in range(4):
        A(f"buffer_load_dwordx4 v[{32+4*s}:{35+4*s}], v10, s[20:23], 0 offen offset:{32*s}")
        A(f"buffer_load_dwordx4 v[{48+4*s}:{51+4*s}], v11, s[20:23], 0 offen offset:{32*s}")
    for r in range(16):
        A(f"v_lshlrev_b32 v{16+r}, 8, v{16+r}\nv_lshl_add_u32 v{16+r}, v3, 2, v{16+r}")
    A("s_waitcnt vmcnt(0)")
    for t in range(4):
        for s in range(9):
            c = f"v[{128+16*t}:{143+16*t}]" if s == 0 else f"v[{192+16*t}:{207+16*t}]"
            j = 4*s + t
            A(f"v_mfma_f32_32x32x16_bf16 v[{192+16*t}:{207+16*t}], a[{4*j}:{4*j+3}], v[{32+4*s}:{35+4*s}], {c}")
    A("s_nop 15")
    for g in range(0, 64, 8):
        for i in range(g, g+8):
            if fold: A(f"v_exp_f32 v{68+i%8}, v{192+i}")
            else: A(f"v_mul_f32 v{68+i%8}, s60, v{192+i}")
        if not fold:
            for i in range(g, g+8): A(f"v_exp_f32 v{68+i%8}, v{68+i%8}")
        for i in range(g, g+8): A(f"v_add_f32 v{68+i%8}, 1.0, v{68+i%8}")
        for i in range(g, g+8): A(f"v_rcp_f32 v{68+i%8}, v{68+i%8}")
        for i in range(g, g+8): A(f"v_mul_f32 v{68+i%8}, v{192+i}, v{68+i%8}")
        if fold:
            for i in range(g, g+8): A(f"v_mul_f32 v{68+i%8}, s61, v{68+i%8}")
        for i in range(g, g+8, 2): A(f"v_cvt_pk_bf16_f32 v{80+i//2}, v{68+i%8}, v{69+i%8}")
    for g in range(2):
        for r in range(16): A(f"v_mov_b32 v{192+16*g+r}, v{8+g}")
    A("s_nop 1")
    for g in range(2):
        for tu in range(8):
            j = 36 + 2*tu + g
            A(f"v_mfma_f32_32x32x16_bf16 v[{192+16*g}:{207+16*g}], v[{80+4*tu}:{83+4*tu}], a[{4*j}:{4*j+3}], v[{192+16*g}:{207+16*g}]")
    A("s_nop 15")
    for g in range(2):
        for r in range(16):
            A(f"buffer_atomic_add_f32 v{192+16*g+r}, v{16+r}, s[48:51], 0 offen offset:{128*g}")
    A(f"""s_waitcnt vmcnt(0)
    s_add_u32 s54, s54, 1024
    s_cmp_lt_u32 s54, {E//32}
    s_cbranch_scc1 k1_loop
k1_done:
    s_endpgm""")
    kernel_begin(A, "k2_kernel")
    A("""s_load_dwordx2 s[4:5], s[0:1], 80
    s_load_dwordx2 s[6:7], s[0:1], 64
    s_waitcnt lgkmcnt(0)""")
    srd(A, 8, 4, N*256, ACC_OFF)
    srd(A, 12, 6, N*128)
    A("""s_lshl_b32 s3, s2, 8
    v_add_u32 v1, s3, v0
    v_lshlrev_b32 v2, 4, v1
    v_lshlrev_b32 v1, 3, v1
    buffer_load_dwordx4 v[4:7], v2, s[8:11], 0 offen
    s_waitcnt vmcnt(0)
    v_cvt_pk_bf16_f32 v4, v4, v5
    v_cvt_pk_bf16_f32 v5, v6, v7
    buffer_store_dwordx2 v[4:5], v1, s[12:15], 0 offen
    s_endpgm""")
    A(probes)
    hdr = HEADER + probe_launch + """; @launch kernel=k0_kernel grid=(3125,1,1) block=(256,1,1) lds=0
; @launch kernel=k1_kernel grid=(256,1,1) block=(256,1,1) lds=0
; @launch kernel=k2_kernel grid=(3125,1,1) block=(256,1,1) lds=0
"""
    return hdr + A.text() + '.section .rodata,"a"\n' + descriptor("k0_kernel", 32, 40) + descriptor("k1_kernel", 512, 70, 256) + descriptor("k2_kernel", 16, 24) + probe_desc
if __name__ == "__main__":
    open("base0.s", "w").write(gen())
    open("base0f.s", "w").write(gen(fold=True))
```

```python
from asmlib import *
import base0
def probe(kind, slot, off, nbytes, flags=""):
    per = (nbytes + 256*1024*16 - 1) // (256*1024*16)
    A = Asm()
    kernel_begin(A, "p_kernel")
    if kind != "empty":
        A(f"s_load_dwordx2 s[4:5], s[0:1], {slot}\ns_load_dwordx2 s[6:7], s[0:1], 80\ns_waitcnt lgkmcnt(0)")
        srd(A, 8, 4, nbytes, off if kind != "copy" else 0)
        srd(A, 12, 6, nbytes, off)
        A(f"s_mul_i32 s3, s2, {per*16384}\nv_lshlrev_b32 v1, 4, v0\nv_add_u32 v1, s3, v1")
        for j in range(per):
            A(f"s_mov_b32 s20, {j*16384}")
            if kind in ("read", "copy"): A(f"buffer_load_dwordx4 v[{4+4*j}:{7+4*j}], v1, s[8:11], s20 offen {flags if kind=='read' else 'nt'}")
            else: A(f"v_mov_b32 v{4+4*j}, 1\nv_mov_b32 v{5+4*j}, 1\nv_mov_b32 v{6+4*j}, 1\nv_mov_b32 v{7+4*j}, 1\nbuffer_store_dwordx4 v[{4+4*j}:{7+4*j}], v1, s[8:11], s20 offen {flags}")
        A("s_waitcnt vmcnt(0)")
        if kind == "copy":
            for j in range(per):
                A(f"s_mov_b32 s20, {j*16384}")
                A(f"buffer_store_dwordx4 v[{4+4*j}:{7+4*j}], v1, s[12:15], s20 offen {flags}")
    A("s_endpgm")
    return base0.gen(A.text(), "; @launch kernel=p_kernel grid=(256,1,1) block=(1024,1,1) lds=0\n", descriptor("p_kernel", 64, 32))
MB = 1 << 20
P = {
 "p_empty": probe("empty", 0, 0, 0),
 "p_rd_e": probe("read", 8, 0, 25600000),
 "p_rd_e_nt": probe("read", 8, 0, 25600000, "nt"),
 "p_wr_32": probe("write", 80, 32*MB, 25600000),
 "p_wr_224": probe("write", 80, 224*MB, 25600000),
 "p_wr_128": probe("write", 80, 128*MB, 25600000),
 "p_rd_ws32": probe("read", 80, 32*MB, 25600000),
 "p_rd_ws224": probe("read", 80, 224*MB, 25600000),
 "p_rd_ws128": probe("read", 80, 128*MB, 25600000),
 "p_cp_32": probe("copy", 8, 32*MB, 25600000),
 "p_cp_224": probe("copy", 8, 224*MB, 25600000),
 "p_cp_224sc": probe("copy", 8, 224*MB, 25600000, "sc1"),
}
for k, v in P.items(): open(f"cdna_kernels/{k}.s", "w").write(v)
```

```python
from asmlib import *
N, E = 50000, 800000
CH, NCH, NB = 3200, 250, 256
WS_WIMG, WS_OFFS, WS_RECS = 0, 65536, 1 << 20
NLOG2E = 0xbfb8aa3b
NLN2 = 0xbf317218
MAGIC = 21990233

def scan64(A, v):
    for ctl in ("row_shr:1 row_mask:0xf", "row_shr:2 row_mask:0xf", "row_shr:4 row_mask:0xf", "row_shr:8 row_mask:0xf",
                "row_bcast:15 row_mask:0xa", "row_bcast:31 row_mask:0xc"):
        A(f"s_nop 1\nv_add_u32_dpp v{v}, v{v}, v{v} {ctl} bank_mask:0xf")

K1_LDS = 2048 + CH*8
def gen_k1(A, name="bin_kernel", stflag=""):
    kernel_begin(A, name)
    A(f"""s_cmp_ge_u32 s2, {NCH}
    s_cbranch_scc1 k1_weights
    s_load_dwordx4 s[4:7], s[0:1], 16
    s_load_dwordx2 s[8:9], s[0:1], 80
    v_lshlrev_b32 v1, 4, v0
    v_and_b32 v2, 255, v0
    v_lshlrev_b32 v2, 2, v2
    v_mov_b32 v3, 0
    ds_write_b32 v2, v3
    s_mul_i32 s3, s2, {CH*4}
    v_cmp_gt_u32 vcc, {CH//4}, v0
    s_mov_b32 s30, {MAGIC}
    s_mov_b64 s[28:29], vcc
    s_waitcnt lgkmcnt(0)""")
    srd(A, 16, 6, E*4)
    A("s_mov_b64 exec, s[28:29]")
    A("buffer_load_dwordx4 v[4:7], v1, s[16:19], s3 offen nt")
    srd(A, 12, 4, E*4)
    A("buffer_load_dwordx4 v[8:11], v1, s[12:15], s3 offen nt")
    srd(A, 20, 8, E*8, WS_RECS)
    srd(A, 24, 8, NCH*1024, WS_OFFS)
    A(f"""s_mul_i32 s31, s2, {CH}
    v_lshl_add_u32 v21, v0, 2, s31
    v_add_u32 v23, 1, v21
    v_add_u32 v25, 2, v21
    v_add_u32 v27, 3, v21
    v_mov_b32 v3, 1
    s_barrier
    s_waitcnt vmcnt(1)""")
    for i in range(4):
        A(f"v_mul_hi_u32 v{12+i}, v{4+i}, s30")
    for i in range(4):
        A(f"v_lshlrev_b32 v{12+i}, 2, v{12+i}\nds_add_rtn_u32 v{16+i}, v{12+i}, v3")
    A("s_waitcnt vmcnt(0)")
    for i in range(4):
        A(f"v_lshl_or_b32 v{20+2*i}, v{4+i}, 16, v{8+i}")
    A("""s_mov_b64 exec, -1
    v_and_b32 v2, 63, v0
    v_lshlrev_b32 v2, 4, v2
    s_waitcnt lgkmcnt(0)
    s_barrier
    ds_read_b128 v[28:31], v2
    s_waitcnt lgkmcnt(0)
    v_add_u32 v33, v28, v29
    v_add_u32 v34, v33, v30
    v_add_u32 v35, v34, v31
    v_mov_b32 v36, v35""")
    scan64(A, 36)
    A("""v_sub_u32 v32, v36, v35
    v_add_u32 v35, v32, v34
    v_add_u32 v34, v32, v33
    v_add_u32 v33, v32, v28
    ds_write_b128 v2, v[32:35] offset:1024
    s_mov_b64 exec, s[28:29]""")
    for i in range(4):
        A(f"ds_read_b32 v{4+i}, v{12+i} offset:1024")
    A(f"""v_cmp_gt_u32 vcc, 64, v0
    s_lshl_b32 s31, s2, 10
    s_cbranch_vccz k1_nooffs""")
    for i in range(4):
        A(f"v_lshl_or_b32 v{36+i}, v{28+i}, 16, v{32+i}")
    A(f"""buffer_store_dwordx4 v[36:39], v2, s[24:27], s31 offen {stflag}
k1_nooffs:""")
    for i in range(4):
        A(f"s_waitcnt lgkmcnt({3})\nv_add_lshl_u32 v{4+i}, v{4+i}, v{16+i}, 3\nds_write_b64 v{4+i}, v[{20+2*i}:{21+2*i}] offset:2048")
    A(f"""s_mul_i32 s3, s2, {CH*8}
    s_add_u32 s31, s3, {CH*4}
    s_waitcnt lgkmcnt(0)
    s_barrier
    ds_read_b128 v[4:7], v1 offset:2048
    ds_read_b128 v[8:11], v1 offset:{2048+CH*4}
    s_waitcnt lgkmcnt(1)
    buffer_store_dwordx4 v[4:7], v1, s[20:23], s3 offen {stflag}
    s_waitcnt lgkmcnt(0)
    buffer_store_dwordx4 v[8:11], v1, s[20:23], s31 offen {stflag}
    s_endpgm
k1_weights:
    s_cmp_ge_u32 s2, 256
    s_cbranch_scc1 k1_done
    s_load_dwordx8 s[4:11], s[0:1], 32
    s_load_dwordx2 s[28:29], s[0:1], 80
    v_lshrrev_b32 v1, 6, v0
    v_and_b32 v2, 63, v0
    v_and_b32 v3, 31, v0
    v_readfirstlane_b32 s3, v1
    v_bfe_u32 v4, v0, 5, 1
    s_sub_u32 s33, s2, {NCH}
    s_mul_i32 s33, s33, 13
    s_add_u32 s3, s3, s33
    s_mov_b32 s36, {NLOG2E}
    s_waitcnt lgkmcnt(0)""")
    srd(A, 12, 4, 144*128*2)
    srd(A, 16, 6, 256)
    srd(A, 20, 8, 128*64*2)
    srd(A, 24, 10, 128)
    srd(A, 28, 28, 65536)
    A("""v_bfe_u32 v5, v3, 2, 1
    v_lshrrev_b32 v6, 3, v3
    v_and_b32 v7, 3, v3
    v_lshl_add_u32 v7, v6, 2, v7
    v_lshl_add_u32 v7, v5, 5, v7
    s_cmp_ge_u32 s3, 55
    s_cbranch_scc1 k1_done
    s_cmp_ge_u32 s3, 54
    s_cbranch_scc1 k1_b1
    s_cmp_ge_u32 s3, 52
    s_cbranch_scc1 k1_b2
    s_cmp_ge_u32 s3, 36
    s_cbranch_scc1 k1_w2
    s_cmp_ge_u32 s3, 20
    s_cbranch_scc1 k1_w1b
    s_mul_i32 s33, s3, 52
    s_lshr_b32 s33, s33, 8
    s_mul_i32 s34, s33, 5
    s_sub_u32 s34, s3, s34
    s_cmp_eq_u32 s34, 4
    s_cselect_b32 s34, 8, s34
    s_branch k1_w1
k1_w1b:
    s_sub_u32 s34, s3, 20
    s_lshr_b32 s33, s34, 2
    s_and_b32 s34, s34, 3
    s_add_u32 s34, s34, 4
k1_w1:
    s_lshl_b32 s34, s34, 12
    s_lshl_b32 s33, s33, 6
    s_add_u32 s33, s33, s34
    v_lshlrev_b32 v10, 11, v4
    v_lshl_add_u32 v10, v3, 1, v10""")
    for i in range(8):
        A(f"buffer_load_ushort v{12+i}, v10, s[12:15], s33 offen offset:{i*256}")
    A("s_waitcnt vmcnt(0)")
    for i in range(8):
        A(f"v_lshlrev_b32 v{12+i}, 16, v{12+i}\nv_mul_f32 v{12+i}, s36, v{12+i}")
    for i in range(4):
        A(f"v_cvt_pk_bf16_f32 v{20+i}, v{12+2*i}, v{13+2*i}")
    A("""s_branch k1_wst
k1_w2:
    s_sub_u32 s33, s3, 36
    s_lshr_b32 s34, s33, 1
    s_lshl_b32 s34, s34, 11
    s_and_b32 s33, s33, 1
    s_lshl_b32 s33, s33, 5
    s_add_u32 s33, s33, s34
    v_lshlrev_b32 v10, 9, v4
    v_lshl_add_u32 v10, v7, 1, v10""")
    for i in range(8):
        A(f"buffer_load_ushort v{12+i}, v10, s[20:23], s33 offen offset:{(8*(i>>2)+(i&3))*128}")
    A("s_waitcnt vmcnt(0)")
    for i in range(4):
        A(f"v_lshl_or_b32 v{20+i}, v{13+2*i}, 16, v{12+2*i}")
    A("""s_branch k1_wst
k1_b2:
    s_sub_u32 s33, s3, 52
    s_lshl_b32 s33, s33, 5
    v_lshlrev_b32 v10, 1, v7
    buffer_load_ushort v12, v10, s[24:27], s33 offen
    v_mov_b32 v21, 0
    v_mov_b32 v22, 0
    v_mov_b32 v23, 0
    v_cmp_eq_u32 vcc, 0, v4
    s_waitcnt vmcnt(0)
    v_lshlrev_b32 v12, 16, v12
    v_mul_f32 v12, s36, v12
    v_cvt_pk_bf16_f32 v13, v12, v12
    v_and_b32 v13, 0xffff0000, v13
    v_sub_f32 v14, v12, v13
    v_cvt_pk_bf16_f32 v20, v13, v14
    v_cndmask_b32 v20, 0, v20, vcc
    s_branch k1_wst
k1_b1:
    v_bfe_u32 v5, v2, 4, 1
    v_and_b32 v6, 15, v2
    v_lshlrev_b32 v10, 4, v6
    v_lshl_add_u32 v10, v5, 3, v10
    buffer_load_dwordx2 v[12:13], v10, s[16:19], 0 offen
    s_waitcnt vmcnt(0)
    v_lshlrev_b32 v20, 16, v12
    v_and_b32 v21, 0xffff0000, v12
    v_lshlrev_b32 v22, 16, v13
    v_and_b32 v23, 0xffff0000, v13
    v_mul_f32 v20, s36, v20
    v_mul_f32 v21, s36, v21
    v_mul_f32 v22, s36, v22
    v_mul_f32 v23, s36, v23
k1_wst:
    s_lshl_b32 s3, s3, 10
    v_lshlrev_b32 v10, 4, v2
    buffer_store_dwordx4 v[20:23], v10, s[28:31], s3 offen
k1_done:
    s_endpgm""")
    return descriptor(name, 40, 40)
```

```python
import re
from asmlib import *
from k1 import *

CAP = 40
CA, CB = 28, 20
XBLK, XTILE = 1056, 4224
SLOT = XTILE + 1024
RING = 4 * SLOT
L_RING = 0
L_TAB = 4 * RING
TABW = 52 * 256
L_CNT = L_TAB + 4 * TABW
L_SLOT = L_CNT + 3072
L_B1 = L_SLOT + 1024
L_HIST = L_B1 + 1024
L_FLAG = L_HIST + 256
K2_LDS = L_FLAG + 64
assert L_TAB % 256 == 0

TAE, TAX, XI, EI, RAX, RAE, SI, VT = 0, 1, [2, 4, 6, 8], 10, 12, 13, 14, 15
NUM, DEN, Q, D, EE = 16, 80, 144, [208, 224], 240
AW1, AW1B, AW2, AB2, AB = 0, 80, 144, 208, [216, 236]
SX, SE, SO, SR, SW = 8, 12, 16, 20, 24
S_W, S_B, S_START, S_NN, S_NS = 28, 29, 30, 31, 32
S_XO = [33, 34, 35]
S_RING, S_THR, S_END = 36, 38, 39
S_M, S_LN2 = 42, 44

def isz(l):
    op = l.split()[0]
    if op.startswith(("v_mfma", "v_pk_", "ds_", "buffer_", "global_", "s_load", "v_accvgpr")) or op.endswith(("_e64", "_dpp")): return 8
    if op in ("v_max3_f32", "v_cvt_pk_bf16_f32", "v_lshl_add_u32", "v_lshl_or_b32", "v_bfe_u32", "v_mad_u32_u24", "v_add_lshl_u32",
              "v_mbcnt_lo_u32_b32", "v_mbcnt_hi_u32_b32", "v_and_or_b32", "v_perm_b32", "v_fma_f32", "v_readlane_b32", "v_add3_u32"): return 8
    if op.startswith("v_cmp") and not l.split()[1].startswith("vcc"): return 8
    for tok in re.split(r"[ ,]+", l)[1:]:
        if op in ("s_nop", "s_waitcnt", "s_setprio", "s_movk_i32", "s_addk_i32") or op.startswith("s_cbranch") or op == "s_branch": break
        try: v = int(tok, 0)
        except ValueError: continue
        if not -16 <= v <= 64: return 8
    return 4

class Blk:
    def __init__(self): self.l = []; self.n = 0
    def __call__(self, s):
        for x in (s if isinstance(s, (list, tuple)) else s.split("\n")):
            x = x.strip()
            if not x: continue
            self.l.append(x)
            if not x.endswith(":") and not x.startswith((";", ".")): self.n += isz(x)
    def align8(self):
        if self.n % 8 == 0: return
        for i in range(len(self.l)-1, -1, -1):
            op = self.l[i].split()[0]
            if op in ("v_exp_f32", "v_rcp_f32", "v_mul_f32") and isz(self.l[i]) == 4:
                self.l[i] = self.l[i].replace(op, op + "_e64", 1); self.n += 4; return
            assert not self.l[i].startswith("v_pk_")
        raise AssertionError

def pr(x): return f"v[{x}:{x+1}]"
def mfma(d, a, b, c, ap="a", bp="a"):
    cs = "0" if c is None else f"v[{c}:{c+15}]"
    return f"v_mfma_f32_32x32x16_bf16 v[{d}:{d+15}], {ap}[{a}:{a+3}], {bp}[{b}:{b+3}], {cs}"

def mem_duties(ph, ent):
    so = [f"s{S_XO[0]}", f"s{S_XO[1]}", f"s{S_XO[2]}", "0"]
    nb = AB[(ph+1) & 1]; nx = ((ph+1) & 3) * SLOT
    o = [f"s_add_u32 m0, s{S_RING}, {ph*SLOT}" if ph else f"s_mov_b32 m0, s{S_RING}"]
    o += [f"buffer_load_dwordx4 v[{XI[j]}:{XI[j]+1}], s[{SX}:{SX+3}], {so[j]} idxen offen offset:{XBLK*j} lds" for j in range(4)]
    o += [f"s_add_u32 m0, s{S_RING}, {ph*SLOT+XTILE}", f"ds_read_u16 v{XI[0]}, v{TAX} offset:{(ph+5)*256}"]
    o += [f"buffer_load_dwordx4 v[{EI}:{EI+1}], s[{SE}:{SE+3}], 0 idxen offen {ent} lds"]
    o += ["s_waitcnt vmcnt(15)"]
    o += [f"ds_read_b128 a[{nb+4*s}:{nb+4*s+3}], v{RAX} offset:{nx+32*s}" for s in range(4)]
    o += [f"ds_read_b128 a[{nb+16}:{nb+19}], v{RAE} offset:{nx+XTILE}"]
    o += [f"ds_read_u16 v{XI[j]}, v{TAX} offset:{(ph+5)*256+64*j}" for j in range(1, 4)]
    o += [f"ds_read_b32 v{EI}, v{TAE} offset:{(ph+5)*256+4}"]
    return o

def row(B, ph, kind, ent, head=(), tail=()):
    md = mem_duties(ph, ent)
    slots = [[[] for _ in range(6)] for _ in range(4)]
    if kind == "m":
        for k in range(4):
            slots[k][0].append("s_mov_b64 exec, -1")
            slots[k][5].append(f"s_mov_b64 exec, s[{S_M}:{S_M+1}]")
        slots[0][0] += [md[0]] + list(head)
        for j in range(4): slots[0][1+j].append(md[1+j])
        slots[1][0].append(md[5]); slots[1][1].append(md[6]); slots[1][2].append(md[7])
        slots[1][3] += [md[8], md[9]]; slots[1][4].append(md[10])
        slots[2][1].append(md[11]); slots[2][2].append(md[12]); slots[2][3].append(md[13]); slots[2][4].append(md[14])
        slots[2][5].insert(0, "s_waitcnt lgkmcnt(1)")
        slots[3][1].append(md[15]); slots[3][2].append(md[16]); slots[3][3].append(md[17])
        slots[3][4] += list(tail)
        slots[3][5].insert(0, "s_waitcnt lgkmcnt(0)")
    else:
        slots[0][0] += [md[0]] + list(head)
        for j in range(4): slots[0][1+j].append(md[1+j])
        slots[0][5].append(md[5])
        slots[1][0].append(md[6]); slots[1][1].append(md[7]); slots[1][2].append(md[8])
        slots[1][3].append(md[9]); slots[1][4].append(md[10]); slots[1][5].append(md[11])
        slots[2][0].append(md[12]); slots[2][1].append(md[13]); slots[2][2].append(md[14]); slots[2][3].append(md[15]); slots[2][4].append(md[16])
        slots[2][5].append("s_waitcnt lgkmcnt(3)")
        slots[3][0].append(md[17])
        slots[3][4] += list(tail)
        slots[3][5].append("s_waitcnt lgkmcnt(0)")
    if ph == 3:
        slots[3][4] += [f"v_add_u32 v{TAX}, 1024, v{TAX}", f"v_add_u32 v{TAE}, 1024, v{TAE}"]
    for k in range(4):
        tm = (k+1) & 3
        bb = AB[ph & 1] if k < 3 else AB[(ph+1) & 1]
        dm = D[tm & 1] if (kind == "m" or k == 3) else NUM + 16*tm
        z = D[k & 1] if kind == "m" else NUM + 16*k
        e = EE if kind == "m" else DEN + 16*k
        nu, de = NUM + 16*k, DEN + 16*k
        t = 0
        for s in range(5):
            B(mfma(dm, AW1 + 20*tm + 4*s, bb + 4*s, Q + 16*tm if s == 0 else dm))
            B(slots[k][s])
            for _ in range(3 if s < 4 else 4):
                B(f"v_exp_f32 v{e+t}, v{z+t}"); t += 1
        B(slots[k][5])
        B.align8()
        if kind == "m":
            for i in range(0, 16, 2): B(f"v_pk_fma_f32 {pr(nu+i)}, {pr(nu+i)}, {pr(e+i)}, {pr(nu+i)}")
            for i in range(0, 16, 2): B(f"v_pk_fma_f32 {pr(nu+i)}, {pr(z+i)}, {pr(de+i)}, {pr(nu+i)}")
            for i in range(0, 16, 2): B(f"v_pk_fma_f32 {pr(de+i)}, {pr(de+i)}, {pr(e+i)}, {pr(de+i)}")
        else:
            for i in range(0, 16, 2): B(f"v_pk_add_f32 {pr(de+i)}, {pr(de+i)}, 1.0 op_sel_hi:[1,0]")

def weave(B, valu, mf, extra=()):
    cost = lambda x: 8 if x.startswith(("v_rcp", "v_exp")) else 4
    tot = sum(map(cost, valu)); acc = 0; k = 0; extra = list(extra)
    for v in valu:
        while k < len(mf) and acc * len(mf) >= k * tot:
            B(mf[k]); k += 1
            if extra: B(extra.pop(0))
        B(v); acc += cost(v)
    for m in mf[k:]: B(m)
    B(extra)

def bias_reads(areg):
    return [f"ds_read_b128 v[{Q+4*i}:{Q+4*i+3}], v{areg} offset:{16*i}" for i in range(16)]

def flush(B, nxt, ent):
    H = [EE, EE+8]
    B("s_mov_b64 exec, -1")
    md = []
    if nxt:
        md = mem_duties(0, ent)
        B(f"""v_mbcnt_lo_u32_b32 v{VT}, -1, 0
        v_mbcnt_hi_u32_b32 v{VT}, -1, v{VT}
        v_lshrrev_b32 v{VT}, 5, v{VT}
        v_lshlrev_b32 v{VT}, 8, v{VT}
        v_add_u32 v{VT}, {L_B1}, v{VT}""")
        B(bias_reads(VT))
    B(f"""v_cvt_f32_ubyte3 v{H[1]}, v{SI}
    v_mov_b32 v{H[1]+1}, 0
    v_mov_b32 v{H[1]+2}, 0
    v_cvt_pk_bf16_f32 v{H[1]}, v{H[1]}, v{H[1]}
    v_mov_b32 v{H[1]+3}, 0
    v_mov_b32 v{VT}, 1.0""")
    def w2(t):
        return [mfma(D[g], AW2 + 4*(2*(2*t+u)+g), H[t & 1] + 4*u, D[g], bp="v") for u in range(2) for g in range(2)]
    for t in range(4):
        nu, de = NUM+16*t, DEN+16*t
        valu = [f"v_max3_f32 v{VT}, v{de+i}, v{de+i+1}, v{VT}" for i in range(0, 16, 2)]
        valu += [f"v_rcp_f32 v{de+i}, v{de+i}" for i in range(16)]
        valu += [f"v_mul_f32 v{nu+i}, v{nu+i}, v{de+i}" for i in range(16)]
        valu += [f"v_cvt_pk_bf16_f32 v{H[t & 1]+i//2}, v{nu+i}, v{nu+i+1}" for i in range(0, 16, 2)]
        B(valu[:2]); valu = valu[2:]
        mf = [mfma(D[g], AB2 + 4*g, H[1], None, bp="v") for g in range(2)] if t == 0 else w2(t-1)
        ex = []
        if nxt:
            mf += [mfma(Q+16*t, AW1B + 16*t + 4*s, AB[0] + 4*s, Q+16*t) for s in range(4)]
            if t == 0: ex = [md[0], "s_waitcnt lgkmcnt(0)"] + md[1:5]
            if t == 1: ex = md[5:13]
            if t == 2: ex = md[13:18]
        weave(B, valu, mf, ex)
    B(f"""v_cmp_le_f32 s[46:47], s48, v{VT}
    v_bfe_u32 v{VT}, v{SI}, 16, 2""")
    m3 = w2(3)
    B(m3[0])
    B(f"""v_cmp_ne_u32 s[40:41], 0, v{VT}
    v_cmp_gt_u32 s[50:51], 2, v{VT}
    v_mbcnt_lo_u32_b32 v{DEN}, -1, 0
    v_mbcnt_hi_u32_b32 v{DEN}, -1, v{DEN}""")
    B(m3[1])
    B(f"""v_and_b32 v{VT}, 0xffff, v{SI}
    v_lshrrev_b32 v{DEN+1}, 5, v{DEN}
    v_lshlrev_b32 v{VT}, 7, v{VT}
    v_lshl_add_u32 v{VT}, v{DEN+1}, 6, v{VT}""")
    B(m3[2])
    B(f"s_or_b64 s[52:53], s[52:53], s[46:47]")
    if nxt:
        B(f"""v_and_b32 v{DEN}, 31, v{DEN}
        v_lshl_add_u32 v{DEN}, v{DEN}, 2, s49
        ds_read_b32 v{SI}, v{DEN}""")
    B(m3[3])
    mf = []
    if nxt:
        B("s_waitcnt lgkmcnt(0)")
        mf = [mfma(NUM, AW1 + 4*s, AB[1] + 4*s, Q if s == 0 else NUM) for s in range(5)]
        B(mf[0]); mf = mf[1:]
        B("s_nop 10")
    else:
        B("s_nop 12")
    o = [D[0]+i for i in range(16)] + [D[1]+i for i in range(16)]
    B(f"v_mov_b32 v{DEN+1}, 0x207")
    weave(B, [f"v_mul_f32 v{x}, s{S_LN2}, v{x}" for x in o], mf)
    B(f"""v_cmp_class_f32 s[46:47], v{D[0]}, v{DEN+1}
    s_mov_b64 exec, s[40:41]""")
    B([f"v_add_f32_dpp v{x}, v{x}, v{x} quad_perm:[1,0,3,2] row_mask:0xf bank_mask:0xf" for x in o])
    B(f"""s_or_b64 s[52:53], s[52:53], s[46:47]
    s_mov_b64 exec, s[50:51]""")
    for q in range(4):
        B([f"v_cvt_pk_bf16_f32 v{EE+4*q+i}, v{o[8*q+2*i]}, v{o[8*q+2*i+1]}" for i in range(4)])
        B(f"buffer_store_dwordx4 v[{EE+4*q}:{EE+4*q+3}], v{VT}, s[{SO}:{SO+3}], 0 offen offset:{16*q}")
    B("s_mov_b64 exec, -1")

def gen_k2(A, name="mpnn_kernel", ent="nt"):
    kernel_begin(A, name)
    REC, RA_, RK, NI = 16, 96, 136, 176
    A(f"""s_cmp_ge_u32 s2, {NB}
    s_cbranch_scc1 k2_done
    s_load_dwordx2 s[{SW}:{SW+1}], s[0:1], 80
    s_load_dwordx4 s[4:7], s[0:1], 0
    s_load_dwordx2 s[{SO}:{SO+1}], s[0:1], 64
    v_lshrrev_b32 v1, 6, v0
    s_and_b32 s{S_B}, s2, 7
    s_lshl_b32 s{S_B}, s{S_B}, 5
    v_readfirstlane_b32 s{S_W}, v1
    s_lshr_b32 s3, s2, 3
    s_add_u32 s{S_B}, s{S_B}, s3
    s_mul_i32 s{S_START}, s{S_B}, 3125
    s_add_u32 s{S_NN}, s{S_START}, {3125+15}
    s_add_u32 s{S_START}, s{S_START}, 15
    s_lshr_b32 s{S_START}, s{S_START}, 4
    s_lshr_b32 s{S_NN}, s{S_NN}, 4
    s_sub_u32 s{S_NN}, s{S_NN}, s{S_START}
    s_sub_u32 s{S_NS}, 256, s{S_NN}
    s_lshl_b32 s3, s{S_B}, 2
    s_add_u32 s3, s3, {WS_OFFS}
    v_lshlrev_b32 v1, 10, v0
    v_and_b32 v3, 63, v0
    v_lshlrev_b32 v4, 4, v3
    s_mov_b32 s{SW+2}, {WS_OFFS + NCH*1024}
    s_mov_b32 s{SW+3}, 0x00020000
    s_mul_i32 s46, s{S_W}, {14*1024}
    s_waitcnt lgkmcnt(0)
    buffer_load_dword v2, v1, s[{SW}:{SW+3}], s3 offen""")
    for j in range(14):
        if j % 4 == 0:
            A(f"s_add_u32 m0, s46, {j*1024}\ns_add_u32 s47, s46, {j*1024}")
        if j == 12:
            A(f"s_cmp_eq_u32 s{S_W}, 3\ns_cselect_b32 m0, {L_B1}, m0\ns_nop 0")
        if j == 13:
            A(f"s_add_u32 m0, s46, {12*1024}\ns_nop 0")
        A(f"buffer_load_dwordx4 v4, s[{SW}:{SW+3}], s47 offen offset:{(j%4)*1024} lds")
    A(f"""s_sub_u32 s{SX}, s4, {3*XBLK}
    s_subb_u32 s{SX+1}, s5, 0
    s_or_b32 s{SX+1}, s{SX+1}, {128<<16}
    s_mov_b32 s{SX+2}, {N}
    s_mov_b32 s{SX+3}, 0x00020000
    s_mov_b32 s{SE}, s6
    s_or_b32 s{SE+1}, s7, {32<<16}
    s_mov_b32 s{SE+2}, {E}
    s_mov_b32 s{SE+3}, 0x00020000
    s_mov_b32 s{SO+2}, {N*128}
    s_mov_b32 s{SO+3}, 0x00020000""")
    srd(A, SR, SW, E*8, WS_RECS)
    A(f"""s_mov_b32 s{S_XO[0]}, {3*XBLK}
    s_mov_b32 s{S_XO[1]}, {2*XBLK}
    s_mov_b32 s{S_XO[2]}, {XBLK}
    s_mul_i32 s{S_RING}, s{S_W}, {RING}
    s_mov_b32 s{S_LN2}, {NLN2}
    s_mov_b32 s48, 0x7b800000
    s_mov_b64 s[52:53], 0
    v_mov_b32 v8, -1
    v_mov_b32 v9, -1
    v_mov_b32 v10, -1
    v_mov_b32 v11, -1
    v_lshlrev_b32 v5, 4, v0
    v_add_u32 v5, {L_TAB}, v5""")
    for j in range(4*TABW // 4096):
        A(f"ds_write_b128 v5, v[8:11] offset:{j*4096}")
    A(f"""v_lshlrev_b32 v6, 2, v0
    v_add_u32 v6, {L_CNT}, v6
    v_mov_b32 v7, 0
    ds_write_b32 v6, v7
    v_lshlrev_b32 v12, 2, v3
    v_add_u32 v12, {L_HIST}, v12
    ds_write2_b32 v12, v7, v7 offset0:0 offset1:16
    v_mul_u32_u24 v1, {CH}, v0
    s_lshl_b32 s3, s{S_START}, 2
    s_sub_u32 s3, {L_CNT}, s3
    v_mov_b32 v13, 0x10001
    s_waitcnt vmcnt(14)
    v_and_b32 v5, 0xffff, v2
    v_lshrrev_b32 v2, 16, v2
    v_add_lshl_u32 v1, v1, v5, 3""")
    for g in range(CAP//2):
        A(f"v_cmpx_lt_u32 vcc, {2*g}, v2")
        if g % 2 == 0 and g >= 6: A("s_cbranch_execz k2_ld_done")
        A(f"buffer_load_dwordx4 v[{REC+4*g}:{REC+4*g+3}], v1, s[{SR}:{SR+3}], 0 offen offset:{16*g}")
    A(f"""k2_ld_done:
    s_mov_b64 exec, -1
    v_cmp_lt_u32 vcc, {CAP}, v2
    s_waitcnt lgkmcnt(0)
    s_barrier
    s_or_b64 s[52:53], s[52:53], vcc
    s_waitcnt vmcnt(0)""")
    for j in range(CAP):
        A(f"v_cmpx_lt_u32 vcc, {j}, v2")
        if j % 4 == 0 and j >= 12: A("s_cbranch_execz k2_rk_done")
        A(f"v_mad_u32_u16 v{RA_+j}, v{REC+2*j}, 4, s3 op_sel:[1,0,0,0]\nds_add_rtn_u32 v{RK+j}, v{RA_+j}, v13")
    A(f"""k2_rk_done:
    s_mov_b64 exec, -1
    s_waitcnt lgkmcnt(0)
    s_barrier
    ds_read_b32 v5, v6""")
    wrd = [f"ds_read_b128 a[{4*j}:{4*j+3}], v4 offset:{1024*j}" for j in range(54)]
    A("\n".join(wrd[:8]))
    A(f"""v_cmp_gt_u32 s[54:55], s{S_NN}, v0
    v_mov_b32 v8, 1
    s_waitcnt lgkmcnt(8)
    v_and_b32 v5, 0xffff, v5
    v_cmp_lt_u32 vcc, 62, v5
    v_min_u32 v5, 62, v5
    v_lshlrev_b32 v7, 2, v5
    v_add_u32 v9, {L_HIST}, v7
    s_or_b64 s[52:53], s[52:53], vcc
    s_mov_b64 exec, s[54:55]
    ds_add_rtn_u32 v8, v9, v8
    s_mov_b64 exec, -1""")
    A("\n".join(wrd[8:18]))
    A(f"""s_waitcnt lgkmcnt(10)
    s_barrier
    ds_read_b32 v9, v12""")
    A("\n".join(wrd[18:30]))
    A(f"""v_add_u32 v10, 1, v5
    v_lshrrev_b32 v11, 1, v10
    s_waitcnt lgkmcnt(12)
    v_cmp_ne_u32 s[46:47], 0, v9""")
    scan64(A, 9)
    A(f"""v_sub_u32 v9, s{S_NN}, v9
    v_lshrrev_b64 v[{NI}:{NI+1}], v10, s[46:47]
    v_ffbl_b32 v{NI}, v{NI}
    v_ffbl_b32 v{NI+1}, v{NI+1}
    v_lshlrev_b32 v14, 2, v11
    v_or_b32 v{NI+1}, 32, v{NI+1}
    v_min_u32 v{NI}, v{NI}, v{NI+1}
    v_add_u32 v{NI}, v{NI}, v10
    v_lshlrev_b32 v{NI+1}, 3, v5
    v_lshlrev_b32 v{NI}, 3, v{NI}
    v_subrev_u32 v{NI+1}, 8, v{NI+1}
    v_subrev_u32 v{NI}, 8, v{NI}
    v_min_u32 v{NI+1}, 252, v{NI+1}
    v_min_u32 v{NI}, 252, v{NI}
    ds_bpermute_b32 v{NI+2}, v7, v9
    ds_bpermute_b32 v{NI+3}, v14, v9
    ds_bpermute_b32 v{NI+4}, v{NI+1}, v9
    ds_bpermute_b32 v{NI+5}, v{NI}, v9""")
    A("\n".join(wrd[30:42]))
    G0, GL, G2, G2N = NI+2, NI+3, NI+4, NI+5
    P_, J_, QQ, T1, T2, T3 = NI+6, NI+7, NI+8, NI+9, NI+10, NI+11
    A(f"""v_cmp_eq_u32 s[56:57], 0, v5
    v_cmp_eq_u32 s[58:59], 0, v8
    v_mov_b32 v{T3}, s{S_NS}
    s_waitcnt lgkmcnt(12)
    v_add_u32 v{P_}, v{G0}, v8
    v_cndmask_b32 v{G2}, v{G2}, v{T3}, s[56:57]
    v_subrev_u32 v{J_}, s{S_NS}, v{P_}
    v_cmp_gt_u32 s[46:47], s{S_NS}, v{P_}
    v_and_b32 v{T1}, 1, v{J_}
    v_subrev_u32 v{GL}, s{S_NS}, v{GL}
    v_cmp_ne_u32 vcc, 0, v{T1}
    v_max_i32 v{GL}, 0, v{GL}
    s_and_b64 vcc, vcc, s[58:59]
    v_add_u32 v{GL}, 1, v{GL}
    v_lshrrev_b32 v{GL}, 1, v{GL}
    v_cndmask_b32 v{G2}, v{G2}, v{G2N}, vcc
    v_add_lshl_u32 v{QQ}, v{P_}, v{GL}, 1
    v_min_u32 v{G2}, s{S_NS}, v{G2}
    v_lshl_add_u32 v{J_}, v{G2}, 1, v{J_}
    v_cndmask_b32 v{QQ}, v{J_}, v{QQ}, s[46:47]
    v_cndmask_b32 v11, v5, v11, s[46:47]
    v_lshrrev_b32 v{T1}, 5, v{QQ}
    v_cmp_gt_u32 vcc, 128, v{QQ}
    v_sub_u32 v{T2}, 7, v{T1}
    v_min_u32 v{T1}, v{T1}, v{T2}
    v_mov_b32 v{T2}, {L_TAB + (CA+1)*256}
    v_mov_b32 v{T3}, {L_TAB + (CA-1)*256}
    v_cndmask_b32 v{T2}, v{T2}, v{T3}, vcc
    v_mul_u32_u24 v{T1}, {TABW}, v{T1}
    v_and_b32 v{T3}, 31, v{QQ}
    v_lshlrev_b32 v{T3}, 3, v{T3}
    v_add3_u32 v{T1}, v{T1}, v{T2}, v{T3}
    v_mov_b32 v{T2}, {CB}
    v_mov_b32 v{T3}, {CA}
    v_cndmask_b32 v{T2}, v{T2}, v{T3}, vcc
    v_cmp_gt_u32 s[56:57], v11, v{T2}
    v_mov_b32 v{T2}, 0x00000100
    v_mov_b32 v{T3}, 0x0000ff00
    v_cndmask_b32 v{G0}, v{T2}, v{T3}, vcc
    v_mov_b32 v{T2}, {((8-128) & 0xffff) << 16 | 128}
    v_mov_b32 v{T3}, {(8+128) << 16 | ((-128) & 0xffff)}
    v_cndmask_b32 v{GL}, v{T2}, v{T3}, vcc
    v_cndmask_b32 v{G0}, v{G0}, v{GL}, s[46:47]
    v_add_u32 v{T2}, s{S_START}, v0
    v_cndmask_b32 v{T3}, 0, 1, s[46:47]
    v_lshl_or_b32 v{T3}, v11, 8, v{T3}
    v_lshl_or_b32 v{T3}, v{T3}, 16, v{T2}
    v_lshrrev_b32 v{GL}, 1, v5
    v_lshl_or_b32 v{GL}, v{GL}, 8, 3
    v_lshl_or_b32 v{GL}, v{GL}, 16, v{T2}
    v_lshlrev_b32 v{QQ}, 2, v{QQ}
    v_add_u32 v{QQ}, {L_SLOT}, v{QQ}
    s_and_b64 s[56:57], s[56:57], s[54:55]
    s_or_b64 s[52:53], s[52:53], s[56:57]
    s_mov_b64 exec, s[54:55]
    ds_write2st64_b32 v6, v{T1}, v{G0} offset0:4 offset1:8
    ds_write_b32 v{QQ}, v{T3}
    s_and_b64 exec, exec, s[46:47]
    ds_write_b32 v{QQ}, v{GL} offset:4
    s_mov_b64 exec, s[52:53]
    v_mov_b32 v{T1}, {L_FLAG}
    ds_write_b32 v{T1}, v13
    s_mov_b64 exec, -1""")
    A("\n".join(wrd[42:54]))
    A(f"""v_and_b32 v7, 31, v0
    v_bfe_u32 v8, v0, 5, 1
    s_lshl_b32 s46, s{S_W}, 7
    s_add_u32 s47, s46, {L_SLOT}
    s_sub_u32 s49, {L_SLOT + 7*128}, s46
    v_lshl_add_u32 v9, v7, 2, s47
    v_lshl_add_u32 v10, v7, 2, s49
    v_mov_b32 v11, {L_FLAG}
    s_waitcnt lgkmcnt(0)
    s_barrier
    ds_read_b32 v11, v11
    ds_read_b32 v{SI}, v9
    ds_read_b32 v{VT}, v10""")
    for j in range(CAP):
        A(f"v_cmpx_lt_u32 vcc, {j}, v2")
        if j % 4 == 0 and j >= 12: A("s_cbranch_execz k2_ni_done")
        A(f"ds_read2st64_b32 v[{NI+2*j}:{NI+2*j+1}], v{RA_+j} offset0:4 offset1:8\nv_and_b32 v{RK+j}, 0x1ffff, v{RK+j}")
    A(f"""k2_ni_done:
    s_mov_b64 exec, -1
    s_mul_i32 s46, s{S_W}, {TABW}
    s_add_u32 s46, s46, {L_TAB}
    v_lshl_add_u32 v9, v7, 3, s46
    v_lshlrev_b32 v5, 4, v8
    s_waitcnt lgkmcnt(0)
    v_readfirstlane_b32 s47, v11
    v_and_b32 v4, 0xffff, v{SI}
    v_readfirstlane_b32 s{S_THR}, v{SI}
    v_readfirstlane_b32 s{S_END}, v{VT}
    s_cmp_lg_u32 s47, 0
    s_cbranch_scc1 k2_slow
    ds_write_b32 v9, v{VT} offset:{CA*256}""")
    for s in range(4):
        A(f"buffer_load_dwordx4 a[{AB[0]+4*s}:{AB[0]+4*s+3}], v[4:5], s[{SX}:{SX+3}], s{S_XO[0]} idxen offen offset:{32*s}")
    for j0 in range(0, CAP, 4):
        if j0 >= 12: A(f"v_cmpx_lt_u32 vcc, {j0}, v2\ns_cbranch_execz k2_sc_done")
        for j in range(j0, j0+4): A(f"v_dot2_i32_i16 v{RA_+j}, v{RK+j}, v{NI+2*j+1}, v{NI+2*j}")
        for j in range(j0, j0+4): A(f"v_cmpx_lt_u32 vcc, {j}, v2\nds_write_b64 v{RA_+j}, v[{REC+2*j}:{REC+2*j+1}]")
    A(f"""k2_sc_done:
    s_mov_b64 exec, -1
    s_lshr_b32 s{S_THR}, s{S_THR}, 24
    s_max_u32 s{S_THR}, s{S_THR}, 1
    s_sub_u32 s47, {CA}, s{S_THR}
    s_lshl_b32 s{S_THR}, s{S_THR}, 24
    s_and_b32 s{S_END}, s{S_END}, 0xff000000
    s_max_u32 s{S_END}, s{S_END}, 0x01000000
    s_and_b32 s56, s47, 3
    s_andn2_b32 s57, s47, 3
    s_lshl_b32 s57, s57, 8
    s_add_u32 s57, s57, s46
    s_lshl_b32 s58, s56, 8
    v_lshlrev_b32 v9, 8, v8
    v_add_u32 v9, {L_B1}, v9
    v_lshrrev_b32 v10, 4, v3
    v_xor_b32 v11, v3, v10
    v_and_b32 v11, 1, v11
    v_and_b32 v12, 6, v3
    v_or_b32 v12, v12, v11
    v_lshlrev_b32 v{EE+15}, 4, v12
    v_lshlrev_b32 v{EE+14}, 4, v11
    v_lshrrev_b32 v{TAX}, 3, v3
    v_lshl_add_u32 v{TAX}, v{TAX}, 3, s57
    v_lshrrev_b32 v{TAE}, 1, v3
    v_lshl_add_u32 v{TAE}, v{TAE}, 3, s57
    v_lshrrev_b32 v12, 3, v7
    v_xor_b32 v13, v12, v8
    v_and_b32 v13, 1, v13
    v_lshlrev_b32 v13, 4, v13
    v_lshl_add_u32 v13, v7, 5, v13
    v_add_u32 v{RAE}, s{S_RING}, v13
    v_lshlrev_b32 v12, 5, v12
    v_lshl_add_u32 v12, v7, 7, v12
    v_lshrrev_b32 v7, 1, v7
    v_xor_b32 v7, v7, v8
    v_and_b32 v7, 1, v7
    v_lshl_add_u32 v12, v7, 4, v12
    v_add_u32 v{RAX}, s{S_RING}, v12
    s_waitcnt lgkmcnt(0)""")
    A("\n".join(bias_reads(9)))
    A(f"""v_add_u32 v{EE+13}, s58, v{TAX}
    v_add_u32 v{EE+12}, s58, v{TAE}""")
    for j in range(4): A(f"v_mov_b32 v{XI[j]+1}, v{EE+15}")
    A(f"v_mov_b32 v{EI+1}, v{EE+14}")
    PT = D[0]
    for k in range(4):
        for j in range(4): A(f"v_mov_b32 v{PT+10*k+2*j+1}, v{EE+15}")
        A(f"v_mov_b32 v{PT+10*k+9}, v{EE+14}")
    A("s_barrier")
    for k in range(5):
        for j in range(4): A(f"ds_read_u16 v{PT+10*k+2*j if k < 4 else XI[j]}, v{EE+13} offset:{256*k+64*j}")
        A(f"ds_read_b32 v{PT+10*k+8 if k < 4 else EI}, v{EE+12} offset:{256*k+4}")
    so = [f"s{S_XO[0]}", f"s{S_XO[1]}", f"s{S_XO[2]}", "0"]
    for k in range(4):
        A(f"""s_add_u32 s59, s56, {k}
        s_and_b32 s59, s59, 3
        s_mul_i32 s59, s59, {SLOT}
        s_add_u32 m0, s59, s{S_RING}
        s_waitcnt lgkmcnt({min(15, 20-5*k)})""")
        for j in range(4):
            A(f"buffer_load_dwordx4 v[{PT+10*k+2*j}:{PT+10*k+2*j+1}], s[{SX}:{SX+3}], {so[j]} idxen offen offset:{XBLK*j} lds")
        A(f"s_add_u32 m0, m0, {XTILE}\ns_nop 0")
        A(f"buffer_load_dwordx4 v[{PT+10*k+8}:{PT+10*k+9}], s[{SE}:{SE+3}], 0 idxen offen {ent} lds")
    A("s_waitcnt vmcnt(20) lgkmcnt(0)")
    B = Blk()
    weave(B, [f"v_mov_b32 v{NUM+i}, 0" for i in range(64)] + [f"v_mov_b32 v{DEN+i}, 1.0" for i in range(64)],
          [mfma(Q+16*t, AW1B + 16*t + 4*s, AB[0] + 4*s, Q+16*t) for t in range(4) for s in range(4)])
    A("\n".join(B.l))
    A("""s_waitcnt vmcnt(15)
    s_cmp_eq_u32 s56, 1
    s_cbranch_scc1 k2_in1
    s_cmp_eq_u32 s56, 2
    s_cbranch_scc1 k2_in2
    s_cmp_eq_u32 s56, 3
    s_cbranch_scc1 k2_in3""")
    for ph in (0, 1, 2, 3):
        nb = AB[ph & 1]
        if ph: A(f"k2_in{ph}:")
        for s in range(4): A(f"ds_read_b128 a[{nb+4*s}:{nb+4*s+3}], v{RAX} offset:{ph*SLOT+32*s}")
        A(f"ds_read_b128 a[{nb+16}:{nb+19}], v{RAE} offset:{ph*SLOT+XTILE}")
        for s in range(5):
            A(f"s_waitcnt lgkmcnt({4-s})")
            A(mfma(D[0], AW1 + 4*s, nb + 4*s, Q if s == 0 else D[0]))
        A(f"s_nop 12\ns_branch k2_la{ph}")
    B = Blk()
    B(".p2align 6")
    for ph in range(4):
        B(f"k2_la{ph}:")
        row(B, ph, "m", ent, head=[f"v_cmp_le_u32 s[{S_M}:{S_M+1}], s{S_THR}, v{SI}"],
            tail=[f"s_sub_u32 s{S_THR}, s{S_THR}, 0x01000000"] + ([f"s_cmp_lg_u32 s{S_THR}, 0"] if ph == 3 else []))
    B("s_cbranch_scc1 k2_la0")
    flush(B, True, ent)
    row(B, 1, "f", ent, tail=[f"s_mov_b32 s{S_THR}, 0x01000000"])
    B(f"""v_cmp_gt_u32 vcc, s{S_THR}, v{SI}
    s_cbranch_vccnz k2_fix0
    k2_fix0_back:
    s_cmp_eq_u32 s{S_THR}, s{S_END}
    s_cbranch_scc1 k2_fin""")
    for ph in (2, 3, 0, 1):
        B(f"k2_lb{ph}:")
        row(B, ph, "m", ent, head=[f"s_add_u32 s{S_THR}, s{S_THR}, 0x01000000", f"v_cmp_le_u32 s[{S_M}:{S_M+1}], s{S_THR}, v{SI}"],
            tail=[f"s_cmp_eq_u32 s{S_THR}, s{S_END}"])
        B("s_cbranch_scc1 k2_fin" if ph != 1 else "s_cbranch_scc0 k2_lb2")
    B("k2_fin:")
    flush(B, False, ent)
    A("\n".join(B.l))
    A(f"""v_mov_b32 v16, {L_FLAG}
    s_mov_b64 exec, s[52:53]
    ds_write_b32 v16, v16
    s_mov_b64 exec, -1
    s_waitcnt lgkmcnt(0)
    s_barrier
    ds_read_b32 v17, v16
    s_waitcnt lgkmcnt(0)
    v_readfirstlane_b32 s47, v17
    s_cmp_lg_u32 s47, 0
    s_cbranch_scc1 k2_slow
k2_done:
    s_endpgm
k2_fix0:
    s_mov_b64 exec, vcc""")
    for i in range(64): A(f"v_mov_b32 v{NUM+i}, 0\nv_mov_b32 v{DEN+i}, 1.0")
    A("s_mov_b64 exec, -1\ns_branch k2_fix0_back")
    gen_slow(A)
    return descriptor(name, 512, 72, 256)

def gen_slow(A):
    ST = 272
    XS, XD, EB, Z, T, H, O = 16, 32, 48, Q, 64, 80, D[0]
    A(f"""k2_slow:
    s_waitcnt vmcnt(0) lgkmcnt(0)
    s_barrier
    v_mbcnt_lo_u32_b32 v3, -1, 0
    v_mbcnt_hi_u32_b32 v3, -1, v3
    s_lshl_b32 s46, s{S_W}, 6
    v_add_u32 v0, s46, v3
    v_and_b32 v7, 31, v3
    v_lshrrev_b32 v8, 5, v3
    v_lshlrev_b32 v1, 4, v0
    v_mov_b32 v16, 0
    v_mov_b32 v17, 0
    v_mov_b32 v18, 0
    v_mov_b32 v19, 0""")
    for j in range(14): A(f"ds_write_b128 v1, v[16:19] offset:{4096*j}")
    A(f"""v_lshlrev_b32 v9, 8, v8
    v_add_u32 v9, {L_B1}, v9
    v_lshlrev_b32 v5, 4, v8
    v_mov_b32 v11, v5
    v_mov_b32 v13, v5
    v_mov_b32 v112, 0x3f803f80
    v_mov_b32 v113, 0
    v_mov_b32 v114, 0
    v_mov_b32 v115, 0
    s_mov_b32 s60, s{S_W}
    s_waitcnt lgkmcnt(0)
    s_barrier
k2_s_chunk:
    s_lshl_b32 s61, s60, 10
    s_lshl_b32 s62, s{S_B}, 2
    s_add_u32 s61, s61, s62
    s_add_u32 s61, s61, {WS_OFFS}
    s_load_dword s62, s[{SW}:{SW+1}], s61
    s_mul_i32 s63, s60, {CH}
    s_waitcnt lgkmcnt(0)
    s_and_b32 s61, s62, 0xffff
    s_lshr_b32 s62, s62, 16
    s_add_u32 s63, s63, s61
k2_s_tile:
    s_cmp_lt_i32 s62, 1
    s_cbranch_scc1 k2_s_next
    v_add_lshl_u32 v1, v7, s63, 3
    buffer_load_dwordx2 v[14:15], v1, s[{SR}:{SR+3}], 0 offen""")
    A("\n".join(bias_reads(9)))
    A(f"""v_cmp_gt_u32 s[40:41], s62, v7
    s_waitcnt vmcnt(0)
    v_and_b32 v4, 0xffff, v14
    v_lshrrev_b32 v10, 16, v14
    v_mov_b32 v12, v15""")
    for s in range(4):
        A(f"buffer_load_dwordx4 v[{XS+4*s}:{XS+4*s+3}], v[4:5], s[{SX}:{SX+3}], s{S_XO[0]} idxen offen offset:{32*s}")
        A(f"buffer_load_dwordx4 v[{XD+4*s}:{XD+4*s+3}], v[10:11], s[{SX}:{SX+3}], s{S_XO[0]} idxen offen offset:{32*s}")
    A(f"""buffer_load_dwordx4 v[{EB}:{EB+3}], v[12:13], s[{SE}:{SE+3}], 0 idxen offen
    v_subrev_u32 v2, s{S_START}, v10
    v_mul_u32_u24 v2, {ST}, v2
    v_lshl_add_u32 v2, v8, 7, v2
    s_waitcnt vmcnt(0) lgkmcnt(0)""")
    for t in range(4):
        for s in range(4): A(mfma(Z+16*t, AW1+20*t+4*s, XS+4*s, Z+16*t, bp="v"))
        A(mfma(Z+16*t, AW1+20*t+16, EB, Z+16*t, bp="v"))
        for s in range(4): A(mfma(Z+16*t, AW1B+16*t+4*s, XD+4*s, Z+16*t, bp="v"))
    for g in range(2): A(mfma(O+16*g, AB2+4*g, 112, None, bp="v"))
    A("s_nop 15")
    for t in range(4):
        for i in range(16): A(f"v_exp_f32 v{T+i}, v{Z+16*t+i}")
        for i in range(16): A(f"v_add_f32 v{T+i}, 1.0, v{T+i}")
        for i in range(16): A(f"v_rcp_f32 v{T+i}, v{T+i}")
        for i in range(16): A(f"v_mul_f32 v{T+i}, v{Z+16*t+i}, v{T+i}")
        for i in range(0, 16, 2): A(f"v_cvt_pk_bf16_f32 v{H+8*t+i//2}, v{T+i}, v{T+i+1}")
    A("s_nop 1")
    for tu in range(8):
        for g in range(2): A(mfma(O+16*g, AW2+4*(2*tu+g), H+4*tu, O+16*g, bp="v"))
    A("s_nop 15")
    for i in range(32): A(f"v_mul_f32 v{O+i}, s{S_LN2}, v{O+i}")
    A("s_mov_b64 exec, s[40:41]")
    for i in range(32): A(f"ds_add_f32 v2, v{O+i} offset:{4*i}")
    A(f"""s_mov_b64 exec, -1
    s_waitcnt lgkmcnt(0)
    s_sub_u32 s62, s62, 32
    s_add_u32 s63, s63, 32
    s_branch k2_s_tile
k2_s_next:
    s_add_u32 s60, s60, 4
    s_cmp_lt_u32 s60, {NCH}
    s_cbranch_scc1 k2_s_chunk
    s_barrier
    v_lshrrev_b32 v1, 3, v0
    v_and_b32 v2, 7, v0
    v_mul_u32_u24 v4, {ST}, v1
    v_lshl_add_u32 v4, v2, 5, v4
    v_add_u32 v6, s{S_START}, v1
    v_lshlrev_b32 v6, 7, v6
    v_lshl_add_u32 v6, v2, 4, v6""")
    for p in range(7):
        A(f"""ds_read_b128 v[16:19], v4 offset:{p*32*ST}
        ds_read_b128 v[20:23], v4 offset:{p*32*ST+16}
        v_cmp_gt_u32 vcc, s{S_NN}, v1
        v_cndmask_b32 v28, -1, v6, vcc
        v_add_u32 v1, 32, v1
        v_add_u32 v6, 4096, v6
        s_waitcnt lgkmcnt(0)
        v_cvt_pk_bf16_f32 v24, v16, v17
        v_cvt_pk_bf16_f32 v25, v18, v19
        v_cvt_pk_bf16_f32 v26, v20, v21
        v_cvt_pk_bf16_f32 v27, v22, v23
        buffer_store_dwordx4 v[24:27], v28, s[{SO}:{SO+3}], 0 offen
        s_waitcnt vmcnt(0)""".replace("v_cndmask_b32 v28", "s_nop 1\nv_cndmask_b32 v28"))
    A("s_endpgm")

def build(**kw):
    A = Asm()
    A('.amdgcn_target "amdgcn-amd-amdhsa--gfx950"\n.text')
    d1 = gen_k1(A, stflag=kw.get("stflag", ""))
    d2 = gen_k2(A, ent=kw.get("ent", "nt"))
    hdr = HEADER + f"""; @launch kernel=bin_kernel grid=(256,1,1) block=(832,1,1) lds={K1_LDS}
; @launch kernel=mpnn_kernel grid=(256,1,1) block=(256,1,1) lds={K2_LDS}
"""
    return hdr + A.text() + '.section .rodata,"a"\n' + d1 + d2

if __name__ == "__main__":
    import sys
    open(sys.argv[1] if len(sys.argv) > 1 else "v1.s", "w").write(build())
```

```python
from asmlib import *
N, E = 50000, 800000
CH, NCH, NB = 3200, 250, 256
WS_WIMG, WS_OFFS, WS_RECS = 0, 65536, 1 << 20
NLOG2E = 0xbfb8aa3b
NLN2 = 0xbf317218
MAGIC = 21990233

def scan64(A, v):
    for ctl in ("row_shr:1 row_mask:0xf", "row_shr:2 row_mask:0xf", "row_shr:4 row_mask:0xf", "row_shr:8 row_mask:0xf",
                "row_bcast:15 row_mask:0xa", "row_bcast:31 row_mask:0xc"):
        A(f"s_nop 1\nv_add_u32_dpp v{v}, v{v}, v{v} {ctl} bank_mask:0xf")

K1_LDS = 2048 + CH*8
def gen_k1(A, name="bin_kernel", stflag=""):
    kernel_begin(A, name)
    A(f""";@stamp 0
    s_cmp_ge_u32 s2, {NCH}
    s_cbranch_scc1 k1_weights
    s_load_dwordx4 s[4:7], s[0:1], 16
    s_load_dwordx2 s[8:9], s[0:1], 80
    v_lshlrev_b32 v1, 4, v0
    v_and_b32 v2, 255, v0
    v_lshlrev_b32 v2, 2, v2
    v_mov_b32 v3, 0
    ds_write_b32 v2, v3
    s_mul_i32 s3, s2, {CH*4}
    v_cmp_gt_u32 vcc, {CH//4}, v0
    s_mov_b32 s30, {MAGIC}
    s_mov_b64 s[28:29], vcc
    s_waitcnt lgkmcnt(0)""")
    srd(A, 16, 6, E*4)
    A("s_mov_b64 exec, s[28:29]")
    A("buffer_load_dwordx4 v[4:7], v1, s[16:19], s3 offen nt")
    srd(A, 12, 4, E*4)
    A("buffer_load_dwordx4 v[8:11], v1, s[12:15], s3 offen nt")
    srd(A, 20, 8, E*8, WS_RECS)
    srd(A, 24, 8, NCH*1024, WS_OFFS)
    A(f"""s_mul_i32 s31, s2, {CH}
    v_lshl_add_u32 v21, v0, 2, s31
    v_add_u32 v23, 1, v21
    v_add_u32 v25, 2, v21
    v_add_u32 v27, 3, v21
    v_mov_b32 v3, 1
    s_barrier
    ;@stamp 1
    s_waitcnt vmcnt(1)
    ;@stamp 2""")
    for i in range(4):
        A(f"v_mul_hi_u32 v{12+i}, v{4+i}, s30")
    for i in range(4):
        A(f"v_lshlrev_b32 v{12+i}, 2, v{12+i}\nds_add_rtn_u32 v{16+i}, v{12+i}, v3")
    A("s_waitcnt vmcnt(0)")
    for i in range(4):
        A(f"v_lshl_or_b32 v{20+2*i}, v{4+i}, 16, v{8+i}")
    A("""s_mov_b64 exec, -1
    v_and_b32 v2, 63, v0
    v_lshlrev_b32 v2, 4, v2
    s_waitcnt lgkmcnt(0)
    s_barrier
    ;@stamp 3
    ds_read_b128 v[28:31], v2
    s_waitcnt lgkmcnt(0)
    v_add_u32 v33, v28, v29
    v_add_u32 v34, v33, v30
    v_add_u32 v35, v34, v31
    v_mov_b32 v36, v35""")
    scan64(A, 36)
    A("""v_sub_u32 v32, v36, v35
    v_add_u32 v35, v32, v34
    v_add_u32 v34, v32, v33
    v_add_u32 v33, v32, v28
    ds_write_b128 v2, v[32:35] offset:1024
    s_mov_b64 exec, s[28:29]""")
    for i in range(4):
        A(f"ds_read_b32 v{4+i}, v{12+i} offset:1024")
    A(f"""v_cmp_gt_u32 vcc, 64, v0
    s_lshl_b32 s31, s2, 10
    s_cbranch_vccz k1_nooffs""")
    for i in range(4):
        A(f"v_lshl_or_b32 v{36+i}, v{28+i}, 16, v{32+i}")
    A(f"""buffer_store_dwordx4 v[36:39], v2, s[24:27], s31 offen {stflag}
k1_nooffs:""")
    for i in range(4):
        A(f"s_waitcnt lgkmcnt({3})\nv_add_lshl_u32 v{4+i}, v{4+i}, v{16+i}, 3\nds_write_b64 v{4+i}, v[{20+2*i}:{21+2*i}] offset:2048")
    A(f"""s_mul_i32 s3, s2, {CH*8}
    s_add_u32 s31, s3, {CH*4}
    s_waitcnt lgkmcnt(0)
    s_barrier
    ;@stamp 4
    ds_read_b128 v[4:7], v1 offset:2048
    ds_read_b128 v[8:11], v1 offset:{2048+CH*4}
    s_waitcnt lgkmcnt(1)
    buffer_store_dwordx4 v[4:7], v1, s[20:23], s3 offen {stflag}
    s_waitcnt lgkmcnt(0)
    buffer_store_dwordx4 v[8:11], v1, s[20:23], s31 offen {stflag}
    ;@stamp 5
    ;@dump 0 0 6
    s_endpgm
k1_weights:
    s_cmp_ge_u32 s2, 256
    s_cbranch_scc1 k1_done
    s_load_dwordx8 s[4:11], s[0:1], 32
    s_load_dwordx2 s[28:29], s[0:1], 80
    v_lshrrev_b32 v1, 6, v0
    v_and_b32 v2, 63, v0
    v_and_b32 v3, 31, v0
    v_readfirstlane_b32 s3, v1
    v_bfe_u32 v4, v0, 5, 1
    s_sub_u32 s33, s2, {NCH}
    s_mul_i32 s33, s33, 13
    s_add_u32 s3, s3, s33
    s_mov_b32 s36, {NLOG2E}
    s_waitcnt lgkmcnt(0)""")
    srd(A, 12, 4, 144*128*2)
    srd(A, 16, 6, 256)
    srd(A, 20, 8, 128*64*2)
    srd(A, 24, 10, 128)
    srd(A, 28, 28, 65536)
    A("""v_bfe_u32 v5, v3, 2, 1
    v_lshrrev_b32 v6, 3, v3
    v_and_b32 v7, 3, v3
    v_lshl_add_u32 v7, v6, 2, v7
    v_lshl_add_u32 v7, v5, 5, v7
    s_cmp_ge_u32 s3, 55
    s_cbranch_scc1 k1_done
    s_cmp_ge_u32 s3, 54
    s_cbranch_scc1 k1_b1
    s_cmp_ge_u32 s3, 52
    s_cbranch_scc1 k1_b2
    s_cmp_ge_u32 s3, 36
    s_cbranch_scc1 k1_w2
    s_cmp_ge_u32 s3, 20
    s_cbranch_scc1 k1_w1b
    s_mul_i32 s33, s3, 52
    s_lshr_b32 s33, s33, 8
    s_mul_i32 s34, s33, 5
    s_sub_u32 s34, s3, s34
    s_cmp_eq_u32 s34, 4
    s_cselect_b32 s34, 8, s34
    s_branch k1_w1
k1_w1b:
    s_sub_u32 s34, s3, 20
    s_lshr_b32 s33, s34, 2
    s_and_b32 s34, s34, 3
    s_add_u32 s34, s34, 4
k1_w1:
    s_lshl_b32 s34, s34, 12
    s_lshl_b32 s33, s33, 6
    s_add_u32 s33, s33, s34
    v_lshlrev_b32 v10, 11, v4
    v_lshl_add_u32 v10, v3, 1, v10""")
    for i in range(8):
        A(f"buffer_load_ushort v{12+i}, v10, s[12:15], s33 offen offset:{i*256}")
    A("s_waitcnt vmcnt(0)")
    for i in range(8):
        A(f"v_lshlrev_b32 v{12+i}, 16, v{12+i}\nv_mul_f32 v{12+i}, s36, v{12+i}")
    for i in range(4):
        A(f"v_cvt_pk_bf16_f32 v{20+i}, v{12+2*i}, v{13+2*i}")
    A("""s_branch k1_wst
k1_w2:
    s_sub_u32 s33, s3, 36
    s_lshr_b32 s34, s33, 1
    s_lshl_b32 s34, s34, 11
    s_and_b32 s33, s33, 1
    s_lshl_b32 s33, s33, 5
    s_add_u32 s33, s33, s34
    v_lshlrev_b32 v10, 9, v4
    v_lshl_add_u32 v10, v7, 1, v10""")
    for i in range(8):
        A(f"buffer_load_ushort v{12+i}, v10, s[20:23], s33 offen offset:{(8*(i>>2)+(i&3))*128}")
    A("s_waitcnt vmcnt(0)")
    for i in range(4):
        A(f"v_lshl_or_b32 v{20+i}, v{13+2*i}, 16, v{12+2*i}")
    A("""s_branch k1_wst
k1_b2:
    s_sub_u32 s33, s3, 52
    s_lshl_b32 s33, s33, 5
    v_lshlrev_b32 v10, 1, v7
    buffer_load_ushort v12, v10, s[24:27], s33 offen
    v_mov_b32 v21, 0
    v_mov_b32 v22, 0
    v_mov_b32 v23, 0
    v_cmp_eq_u32 vcc, 0, v4
    s_waitcnt vmcnt(0)
    v_lshlrev_b32 v12, 16, v12
    v_mul_f32 v12, s36, v12
    v_cvt_pk_bf16_f32 v13, v12, v12
    v_and_b32 v13, 0xffff0000, v13
    v_sub_f32 v14, v12, v13
    v_cvt_pk_bf16_f32 v20, v13, v14
    v_cndmask_b32 v20, 0, v20, vcc
    s_branch k1_wst
k1_b1:
    v_bfe_u32 v5, v2, 4, 1
    v_and_b32 v6, 15, v2
    v_lshlrev_b32 v10, 4, v6
    v_lshl_add_u32 v10, v5, 3, v10
    buffer_load_dwordx2 v[12:13], v10, s[16:19], 0 offen
    s_waitcnt vmcnt(0)
    v_lshlrev_b32 v20, 16, v12
    v_and_b32 v21, 0xffff0000, v12
    v_lshlrev_b32 v22, 16, v13
    v_and_b32 v23, 0xffff0000, v13
    v_mul_f32 v20, s36, v20
    v_mul_f32 v21, s36, v21
    v_mul_f32 v22, s36, v22
    v_mul_f32 v23, s36, v23
k1_wst:
    s_lshl_b32 s3, s3, 10
    v_lshlrev_b32 v10, 4, v2
    buffer_store_dwordx4 v[20:23], v10, s[28:31], s3 offen
k1_done:
    s_endpgm""")
    return descriptor(name, 40, 40)
```

```python
import re
from asmlib import *
from k1 import *

CAP = 40
CA, CB = 28, 20
XBLK, XTILE = 1056, 4224
SLOT = XTILE + 1024
RING = 4 * SLOT
L_RING = 0
L_TAB = 4 * RING
TABW = 52 * 256
L_CNT = L_TAB + 4 * TABW
L_SLOT = L_CNT + 3072
L_B1 = L_SLOT + 1024
L_HIST = L_B1 + 1024
L_FLAG = L_HIST + 256
K2_LDS = L_FLAG + 64
assert L_TAB % 256 == 0

TAE, TAX, XI, EI, RAX, RAE, SI, VT = 0, 1, [2, 4, 6, 8], 10, 12, 13, 14, 15
NUM, DEN, Q, D, EE = 16, 80, 144, [208, 224], 240
AW1, AW1B, AW2, AB2, AB = 0, 80, 144, 208, [216, 236]
SX, SE, SO, SR, SW = 8, 12, 16, 20, 24
S_W, S_B, S_START, S_NN, S_NS = 28, 29, 30, 31, 32
S_XO = [33, 34, 35]
S_RING, S_THR, S_END = 36, 38, 39
S_M, S_LN2 = 42, 44

def isz(l):
    op = l.split()[0]
    if op.startswith(("v_mfma", "v_pk_", "ds_", "buffer_", "global_", "s_load", "v_accvgpr")) or op.endswith(("_e64", "_dpp")): return 8
    if op in ("v_max3_f32", "v_cvt_pk_bf16_f32", "v_lshl_add_u32", "v_lshl_or_b32", "v_bfe_u32", "v_mad_u32_u24", "v_add_lshl_u32",
              "v_mbcnt_lo_u32_b32", "v_mbcnt_hi_u32_b32", "v_and_or_b32", "v_perm_b32", "v_fma_f32", "v_readlane_b32", "v_add3_u32"): return 8
    if op.startswith("v_cmp") and not l.split()[1].startswith("vcc"): return 8
    for tok in re.split(r"[ ,]+", l)[1:]:
        if op in ("s_nop", "s_waitcnt", "s_setprio", "s_movk_i32", "s_addk_i32") or op.startswith("s_cbranch") or op == "s_branch": break
        try: v = int(tok, 0)
        except ValueError: continue
        if not -16 <= v <= 64: return 8
    return 4

class Blk:
    def __init__(self): self.l = []; self.n = 0
    def __call__(self, s):
        for x in (s if isinstance(s, (list, tuple)) else s.split("\n")):
            x = x.strip()
            if not x: continue
            self.l.append(x)
            if not x.endswith(":") and not x.startswith((";", ".")): self.n += isz(x)
    def align8(self):
        if self.n % 8 == 0: return
        for i in range(len(self.l)-1, -1, -1):
            op = self.l[i].split()[0]
            if op in ("v_exp_f32", "v_rcp_f32", "v_mul_f32") and isz(self.l[i]) == 4:
                self.l[i] = self.l[i].replace(op, op + "_e64", 1); self.n += 4; return
            assert not self.l[i].startswith("v_pk_")
        raise AssertionError

def pr(x): return f"v[{x}:{x+1}]"
def mfma(d, a, b, c, ap="a", bp="a"):
    cs = "0" if c is None else f"v[{c}:{c+15}]"
    return f"v_mfma_f32_32x32x16_bf16 v[{d}:{d+15}], {ap}[{a}:{a+3}], {bp}[{b}:{b+3}], {cs}"

def mem_duties(ph, ent):
    so = [f"s{S_XO[0]}", f"s{S_XO[1]}", f"s{S_XO[2]}", "0"]
    nb = AB[(ph+1) & 1]; nx = ((ph+1) & 3) * SLOT
    o = [f"s_add_u32 m0, s{S_RING}, {ph*SLOT}" if ph else f"s_mov_b32 m0, s{S_RING}"]
    o += [f"buffer_load_dwordx4 v[{XI[j]}:{XI[j]+1}], s[{SX}:{SX+3}], {so[j]} idxen offen offset:{XBLK*j} lds" for j in range(4)]
    o += [f"s_add_u32 m0, s{S_RING}, {ph*SLOT+XTILE}", f"ds_read_u16 v{XI[0]}, v{TAX} offset:{(ph+5)*256}"]
    o += [f"buffer_load_dwordx4 v[{EI}:{EI+1}], s[{SE}:{SE+3}], 0 idxen offen {ent} lds"]
    o += ["s_waitcnt vmcnt(15)"]
    o += [f"ds_read_b128 a[{nb+4*s}:{nb+4*s+3}], v{RAX} offset:{nx+32*s}" for s in range(4)]
    o += [f"ds_read_b128 a[{nb+16}:{nb+19}], v{RAE} offset:{nx+XTILE}"]
    o += [f"ds_read_u16 v{XI[j]}, v{TAX} offset:{(ph+5)*256+64*j}" for j in range(1, 4)]
    o += [f"ds_read_b32 v{EI}, v{TAE} offset:{(ph+5)*256+4}"]
    return o

def row(B, ph, kind, ent, head=(), tail=()):
    md = mem_duties(ph, ent)
    slots = [[[] for _ in range(6)] for _ in range(4)]
    if kind == "m":
        for k in range(4):
            slots[k][0].append("s_mov_b64 exec, -1")
            slots[k][5].append(f"s_mov_b64 exec, s[{S_M}:{S_M+1}]")
        slots[0][0] += [md[0]] + list(head)
        for j in range(4): slots[0][1+j].append(md[1+j])
        slots[1][0].append(md[5]); slots[1][1].append(md[6]); slots[1][2].append(md[7])
        slots[1][3] += [md[8], md[9]]; slots[1][4].append(md[10])
        slots[2][1].append(md[11]); slots[2][2].append(md[12]); slots[2][3].append(md[13]); slots[2][4].append(md[14])
        slots[2][5].insert(0, "s_waitcnt lgkmcnt(1)")
        slots[3][1].append(md[15]); slots[3][2].append(md[16]); slots[3][3].append(md[17])
        slots[3][4] += list(tail)
        slots[3][5].insert(0, "s_waitcnt lgkmcnt(0)")
    else:
        slots[0][0] += [md[0]] + list(head)
        for j in range(4): slots[0][1+j].append(md[1+j])
        slots[0][5].append(md[5])
        slots[1][0].append(md[6]); slots[1][1].append(md[7]); slots[1][2].append(md[8])
        slots[1][3].append(md[9]); slots[1][4].append(md[10]); slots[1][5].append(md[11])
        slots[2][0].append(md[12]); slots[2][1].append(md[13]); slots[2][2].append(md[14]); slots[2][3].append(md[15]); slots[2][4].append(md[16])
        slots[2][5].append("s_waitcnt lgkmcnt(3)")
        slots[3][0].append(md[17])
        slots[3][4] += list(tail)
        slots[3][5].append("s_waitcnt lgkmcnt(0)")
    if ph == 3:
        slots[3][4] += [f"v_add_u32 v{TAX}, 1024, v{TAX}", f"v_add_u32 v{TAE}, 1024, v{TAE}"]
    for k in range(4):
        tm = (k+1) & 3
        bb = AB[ph & 1] if k < 3 else AB[(ph+1) & 1]
        dm = D[tm & 1] if (kind == "m" or k == 3) else NUM + 16*tm
        z = D[k & 1] if kind == "m" else NUM + 16*k
        e = EE if kind == "m" else DEN + 16*k
        nu, de = NUM + 16*k, DEN + 16*k
        t = 0
        for s in range(5):
            B(mfma(dm, AW1 + 20*tm + 4*s, bb + 4*s, Q + 16*tm if s == 0 else dm))
            B(slots[k][s])
            for _ in range(3 if s < 4 else 4):
                B(f"v_exp_f32 v{e+t}, v{z+t}"); t += 1
        B(slots[k][5])
        B.align8()
        if kind == "m":
            for i in range(0, 16, 2): B(f"v_pk_fma_f32 {pr(nu+i)}, {pr(nu+i)}, {pr(e+i)}, {pr(nu+i)}")
            for i in range(0, 16, 2): B(f"v_pk_fma_f32 {pr(nu+i)}, {pr(z+i)}, {pr(de+i)}, {pr(nu+i)}")
            for i in range(0, 16, 2): B(f"v_pk_fma_f32 {pr(de+i)}, {pr(de+i)}, {pr(e+i)}, {pr(de+i)}")
        else:
            for i in range(0, 16, 2): B(f"v_pk_add_f32 {pr(de+i)}, {pr(de+i)}, 1.0 op_sel_hi:[1,0]")

def weave(B, valu, mf, extra=()):
    cost = lambda x: 8 if x.startswith(("v_rcp", "v_exp")) else 4
    tot = sum(map(cost, valu)); acc = 0; k = 0; extra = list(extra)
    for v in valu:
        while k < len(mf) and acc * len(mf) >= k * tot:
            B(mf[k]); k += 1
            if extra: B(extra.pop(0))
        B(v); acc += cost(v)
    for m in mf[k:]: B(m)
    B(extra)

def bias_reads(areg):
    return [f"ds_read_b128 v[{Q+4*i}:{Q+4*i+3}], v{areg} offset:{16*i}" for i in range(16)]

def flush(B, nxt, ent):
    H = [EE, EE+8]
    B("s_mov_b64 exec, -1")
    md = []
    if nxt:
        md = mem_duties(0, ent)
        B(f"""v_mbcnt_lo_u32_b32 v{VT}, -1, 0
        v_mbcnt_hi_u32_b32 v{VT}, -1, v{VT}
        v_lshrrev_b32 v{VT}, 5, v{VT}
        v_lshlrev_b32 v{VT}, 8, v{VT}
        v_add_u32 v{VT}, {L_B1}, v{VT}""")
        B(bias_reads(VT))
    B(f"""v_cvt_f32_ubyte3 v{H[1]}, v{SI}
    v_mov_b32 v{H[1]+1}, 0
    v_mov_b32 v{H[1]+2}, 0
    v_cvt_pk_bf16_f32 v{H[1]}, v{H[1]}, v{H[1]}
    v_mov_b32 v{H[1]+3}, 0
    v_mov_b32 v{VT}, 1.0""")
    def w2(t):
        return [mfma(D[g], AW2 + 4*(2*(2*t+u)+g), H[t & 1] + 4*u, D[g], bp="v") for u in range(2) for g in range(2)]
    for t in range(4):
        nu, de = NUM+16*t, DEN+16*t
        valu = [f"v_max3_f32 v{VT}, v{de+i}, v{de+i+1}, v{VT}" for i in range(0, 16, 2)]
        valu += [f"v_rcp_f32 v{de+i}, v{de+i}" for i in range(16)]
        valu += [f"v_mul_f32 v{nu+i}, v{nu+i}, v{de+i}" for i in range(16)]
        valu += [f"v_cvt_pk_bf16_f32 v{H[t & 1]+i//2}, v{nu+i}, v{nu+i+1}" for i in range(0, 16, 2)]
        B(valu[:2]); valu = valu[2:]
        mf = [mfma(D[g], AB2 + 4*g, H[1], None, bp="v") for g in range(2)] if t == 0 else w2(t-1)
        ex = []
        if nxt:
            mf += [mfma(Q+16*t, AW1B + 16*t + 4*s, AB[0] + 4*s, Q+16*t) for s in range(4)]
            if t == 0: ex = [md[0], "s_waitcnt lgkmcnt(0)"] + md[1:5]
            if t == 1: ex = md[5:13]
            if t == 2: ex = md[13:18]
        weave(B, valu, mf, ex)
    B(f"""v_cmp_le_f32 s[46:47], s48, v{VT}
    v_bfe_u32 v{VT}, v{SI}, 16, 2""")
    m3 = w2(3)
    B(m3[0])
    B(f"""v_cmp_ne_u32 s[40:41], 0, v{VT}
    v_cmp_gt_u32 s[50:51], 2, v{VT}
    v_mbcnt_lo_u32_b32 v{DEN}, -1, 0
    v_mbcnt_hi_u32_b32 v{DEN}, -1, v{DEN}""")
    B(m3[1])
    B(f"""v_and_b32 v{VT}, 0xffff, v{SI}
    v_lshrrev_b32 v{DEN+1}, 5, v{DEN}
    v_lshlrev_b32 v{VT}, 7, v{VT}
    v_lshl_add_u32 v{VT}, v{DEN+1}, 6, v{VT}""")
    B(m3[2])
    B(f"s_or_b64 s[52:53], s[52:53], s[46:47]")
    if nxt:
        B(f"""v_and_b32 v{DEN}, 31, v{DEN}
        v_lshl_add_u32 v{DEN}, v{DEN}, 2, s49
        ds_read_b32 v{SI}, v{DEN}""")
    B(m3[3])
    mf = []
    if nxt:
        B("s_waitcnt lgkmcnt(0)")
        mf = [mfma(NUM, AW1 + 4*s, AB[1] + 4*s, Q if s == 0 else NUM) for s in range(5)]
        B(mf[0]); mf = mf[1:]
        B("s_nop 10")
    else:
        B("s_nop 12")
    o = [D[0]+i for i in range(16)] + [D[1]+i for i in range(16)]
    B(f"v_mov_b32 v{DEN+1}, 0x207")
    weave(B, [f"v_mul_f32 v{x}, s{S_LN2}, v{x}" for x in o], mf)
    B(f"""v_cmp_class_f32 s[46:47], v{D[0]}, v{DEN+1}
    s_mov_b64 exec, s[40:41]""")
    B([f"v_add_f32_dpp v{x}, v{x}, v{x} quad_perm:[1,0,3,2] row_mask:0xf bank_mask:0xf" for x in o])
    B(f"""s_or_b64 s[52:53], s[52:53], s[46:47]
    s_mov_b64 exec, s[50:51]""")
    for q in range(4):
        B([f"v_cvt_pk_bf16_f32 v{EE+4*q+i}, v{o[8*q+2*i]}, v{o[8*q+2*i+1]}" for i in range(4)])
        B(f"buffer_store_dwordx4 v[{EE+4*q}:{EE+4*q+3}], v{VT}, s[{SO}:{SO+3}], 0 offen offset:{16*q}")
    B("s_mov_b64 exec, -1")

def gen_k2(A, name="mpnn_kernel", ent="nt"):
    kernel_begin(A, name)
    REC, RA_, RK, NI = 16, 96, 136, 176
    A(f""";@stamp 0
    s_cmp_ge_u32 s2, {NB}
    s_cbranch_scc1 k2_done
    s_load_dwordx2 s[{SW}:{SW+1}], s[0:1], 80
    s_load_dwordx4 s[4:7], s[0:1], 0
    s_load_dwordx2 s[{SO}:{SO+1}], s[0:1], 64
    v_lshrrev_b32 v1, 6, v0
    s_and_b32 s{S_B}, s2, 7
    s_lshl_b32 s{S_B}, s{S_B}, 5
    v_readfirstlane_b32 s{S_W}, v1
    s_lshr_b32 s3, s2, 3
    s_add_u32 s{S_B}, s{S_B}, s3
    s_mul_i32 s{S_START}, s{S_B}, 3125
    s_add_u32 s{S_NN}, s{S_START}, {3125+15}
    s_add_u32 s{S_START}, s{S_START}, 15
    s_lshr_b32 s{S_START}, s{S_START}, 4
    s_lshr_b32 s{S_NN}, s{S_NN}, 4
    s_sub_u32 s{S_NN}, s{S_NN}, s{S_START}
    s_sub_u32 s{S_NS}, 256, s{S_NN}
    s_lshl_b32 s3, s{S_B}, 2
    s_add_u32 s3, s3, {WS_OFFS}
    v_lshlrev_b32 v1, 10, v0
    v_and_b32 v3, 63, v0
    v_lshlrev_b32 v4, 4, v3
    s_mov_b32 s{SW+2}, {WS_OFFS + NCH*1024}
    s_mov_b32 s{SW+3}, 0x00020000
    s_mul_i32 s46, s{S_W}, {14*1024}
    s_waitcnt lgkmcnt(0)
    buffer_load_dword v2, v1, s[{SW}:{SW+3}], s3 offen""")
    for j in range(14):
        if j % 4 == 0:
            A(f"s_add_u32 m0, s46, {j*1024}\ns_add_u32 s47, s46, {j*1024}")
        if j == 12:
            A(f"s_cmp_eq_u32 s{S_W}, 3\ns_cselect_b32 m0, {L_B1}, m0\ns_nop 0")
        if j == 13:
            A(f"s_add_u32 m0, s46, {12*1024}\ns_nop 0")
        A(f"buffer_load_dwordx4 v4, s[{SW}:{SW+3}], s47 offen offset:{(j%4)*1024} lds")
    A(f"""s_sub_u32 s{SX}, s4, {3*XBLK}
    s_subb_u32 s{SX+1}, s5, 0
    s_or_b32 s{SX+1}, s{SX+1}, {128<<16}
    s_mov_b32 s{SX+2}, {N}
    s_mov_b32 s{SX+3}, 0x00020000
    s_mov_b32 s{SE}, s6
    s_or_b32 s{SE+1}, s7, {32<<16}
    s_mov_b32 s{SE+2}, {E}
    s_mov_b32 s{SE+3}, 0x00020000
    s_mov_b32 s{SO+2}, {N*128}
    s_mov_b32 s{SO+3}, 0x00020000""")
    srd(A, SR, SW, E*8, WS_RECS)
    A(f"""s_mov_b32 s{S_XO[0]}, {3*XBLK}
    s_mov_b32 s{S_XO[1]}, {2*XBLK}
    s_mov_b32 s{S_XO[2]}, {XBLK}
    s_mul_i32 s{S_RING}, s{S_W}, {RING}
    s_mov_b32 s{S_LN2}, {NLN2}
    s_mov_b32 s48, 0x7b800000
    s_mov_b64 s[52:53], 0
    v_mov_b32 v8, -1
    v_mov_b32 v9, -1
    v_mov_b32 v10, -1
    v_mov_b32 v11, -1
    v_lshlrev_b32 v5, 4, v0
    v_add_u32 v5, {L_TAB}, v5""")
    for j in range(4*TABW // 4096):
        A(f"ds_write_b128 v5, v[8:11] offset:{j*4096}")
    A(f"""v_lshlrev_b32 v6, 2, v0
    v_add_u32 v6, {L_CNT}, v6
    v_mov_b32 v7, 0
    ds_write_b32 v6, v7
    v_lshlrev_b32 v12, 2, v3
    v_add_u32 v12, {L_HIST}, v12
    ds_write2_b32 v12, v7, v7 offset0:0 offset1:16
    v_mul_u32_u24 v1, {CH}, v0
    s_lshl_b32 s3, s{S_START}, 2
    s_sub_u32 s3, {L_CNT}, s3
    v_mov_b32 v13, 0x10001
    ;@stamp 1
    s_waitcnt vmcnt(14)
    ;@stamp 2
    v_and_b32 v5, 0xffff, v2
    v_lshrrev_b32 v2, 16, v2
    v_add_lshl_u32 v1, v1, v5, 3""")
    for g in range(CAP//2):
        A(f"v_cmpx_lt_u32 vcc, {2*g}, v2")
        if g % 2 == 0 and g >= 6: A("s_cbranch_execz k2_ld_done")
        A(f"buffer_load_dwordx4 v[{REC+4*g}:{REC+4*g+3}], v1, s[{SR}:{SR+3}], 0 offen offset:{16*g}")
    A(f"""k2_ld_done:
    s_mov_b64 exec, -1
    v_cmp_lt_u32 vcc, {CAP}, v2
    s_waitcnt lgkmcnt(0)
    s_barrier
    s_or_b64 s[52:53], s[52:53], vcc
    ;@stamp 3
    s_waitcnt vmcnt(0)
    ;@stamp 4""")
    for j in range(CAP):
        A(f"v_cmpx_lt_u32 vcc, {j}, v2")
        if j % 4 == 0 and j >= 12: A("s_cbranch_execz k2_rk_done")
        A(f"v_mad_u32_u16 v{RA_+j}, v{REC+2*j}, 4, s3 op_sel:[1,0,0,0]\nds_add_rtn_u32 v{RK+j}, v{RA_+j}, v13")
    A(f"""k2_rk_done:
    s_mov_b64 exec, -1
    s_waitcnt lgkmcnt(0)
    s_barrier
    ;@stamp 5
    ds_read_b32 v5, v6""")
    wrd = [f"ds_read_b128 a[{4*j}:{4*j+3}], v4 offset:{1024*j}" for j in range(54)]
    A("\n".join(wrd[:8]))
    A(f"""v_cmp_gt_u32 s[54:55], s{S_NN}, v0
    v_mov_b32 v8, 1
    s_waitcnt lgkmcnt(8)
    v_and_b32 v5, 0xffff, v5
    v_cmp_lt_u32 vcc, 62, v5
    v_min_u32 v5, 62, v5
    v_lshlrev_b32 v7, 2, v5
    v_add_u32 v9, {L_HIST}, v7
    s_or_b64 s[52:53], s[52:53], vcc
    s_mov_b64 exec, s[54:55]
    ds_add_rtn_u32 v8, v9, v8
    s_mov_b64 exec, -1""")
    A("\n".join(wrd[8:18]))
    A(f"""s_waitcnt lgkmcnt(10)
    s_barrier
    ds_read_b32 v9, v12""")
    A("\n".join(wrd[18:30]))
    A(f"""v_add_u32 v10, 1, v5
    v_lshrrev_b32 v11, 1, v10
    s_waitcnt lgkmcnt(12)
    v_cmp_ne_u32 s[46:47], 0, v9""")
    scan64(A, 9)
    A(f"""v_sub_u32 v9, s{S_NN}, v9
    v_lshrrev_b64 v[{NI}:{NI+1}], v10, s[46:47]
    v_ffbl_b32 v{NI}, v{NI}
    v_ffbl_b32 v{NI+1}, v{NI+1}
    v_lshlrev_b32 v14, 2, v11
    v_or_b32 v{NI+1}, 32, v{NI+1}
    v_min_u32 v{NI}, v{NI}, v{NI+1}
    v_add_u32 v{NI}, v{NI}, v10
    v_lshlrev_b32 v{NI+1}, 3, v5
    v_lshlrev_b32 v{NI}, 3, v{NI}
    v_subrev_u32 v{NI+1}, 8, v{NI+1}
    v_subrev_u32 v{NI}, 8, v{NI}
    v_min_u32 v{NI+1}, 252, v{NI+1}
    v_min_u32 v{NI}, 252, v{NI}
    ds_bpermute_b32 v{NI+2}, v7, v9
    ds_bpermute_b32 v{NI+3}, v14, v9
    ds_bpermute_b32 v{NI+4}, v{NI+1}, v9
    ds_bpermute_b32 v{NI+5}, v{NI}, v9""")
    A("\n".join(wrd[30:42]))
    G0, GL, G2, G2N = NI+2, NI+3, NI+4, NI+5
    P_, J_, QQ, T1, T2, T3 = NI+6, NI+7, NI+8, NI+9, NI+10, NI+11
    A(f"""v_cmp_eq_u32 s[56:57], 0, v5
    v_cmp_eq_u32 s[58:59], 0, v8
    v_mov_b32 v{T3}, s{S_NS}
    s_waitcnt lgkmcnt(12)
    v_add_u32 v{P_}, v{G0}, v8
    v_cndmask_b32 v{G2}, v{G2}, v{T3}, s[56:57]
    v_subrev_u32 v{J_}, s{S_NS}, v{P_}
    v_cmp_gt_u32 s[46:47], s{S_NS}, v{P_}
    v_and_b32 v{T1}, 1, v{J_}
    v_subrev_u32 v{GL}, s{S_NS}, v{GL}
    v_cmp_ne_u32 vcc, 0, v{T1}
    v_max_i32 v{GL}, 0, v{GL}
    s_and_b64 vcc, vcc, s[58:59]
    v_add_u32 v{GL}, 1, v{GL}
    v_lshrrev_b32 v{GL}, 1, v{GL}
    v_cndmask_b32 v{G2}, v{G2}, v{G2N}, vcc
    v_add_lshl_u32 v{QQ}, v{P_}, v{GL}, 1
    v_min_u32 v{G2}, s{S_NS}, v{G2}
    v_lshl_add_u32 v{J_}, v{G2}, 1, v{J_}
    v_cndmask_b32 v{QQ}, v{J_}, v{QQ}, s[46:47]
    v_cndmask_b32 v11, v5, v11, s[46:47]
    v_lshrrev_b32 v{T1}, 5, v{QQ}
    v_cmp_gt_u32 vcc, 128, v{QQ}
    v_sub_u32 v{T2}, 7, v{T1}
    v_min_u32 v{T1}, v{T1}, v{T2}
    v_mov_b32 v{T2}, {L_TAB + (CA+1)*256}
    v_mov_b32 v{T3}, {L_TAB + (CA-1)*256}
    v_cndmask_b32 v{T2}, v{T2}, v{T3}, vcc
    v_mul_u32_u24 v{T1}, {TABW}, v{T1}
    v_and_b32 v{T3}, 31, v{QQ}
    v_lshlrev_b32 v{T3}, 3, v{T3}
    v_add3_u32 v{T1}, v{T1}, v{T2}, v{T3}
    v_mov_b32 v{T2}, {CB}
    v_mov_b32 v{T3}, {CA}
    v_cndmask_b32 v{T2}, v{T2}, v{T3}, vcc
    v_cmp_gt_u32 s[56:57], v11, v{T2}
    v_mov_b32 v{T2}, 0x00000100
    v_mov_b32 v{T3}, 0x0000ff00
    v_cndmask_b32 v{G0}, v{T2}, v{T3}, vcc
    v_mov_b32 v{T2}, {((8-128) & 0xffff) << 16 | 128}
    v_mov_b32 v{T3}, {(8+128) << 16 | ((-128) & 0xffff)}
    v_cndmask_b32 v{GL}, v{T2}, v{T3}, vcc
    v_cndmask_b32 v{G0}, v{G0}, v{GL}, s[46:47]
    v_add_u32 v{T2}, s{S_START}, v0
    v_cndmask_b32 v{T3}, 0, 1, s[46:47]
    v_lshl_or_b32 v{T3}, v11, 8, v{T3}
    v_lshl_or_b32 v{T3}, v{T3}, 16, v{T2}
    v_lshrrev_b32 v{GL}, 1, v5
    v_lshl_or_b32 v{GL}, v{GL}, 8, 3
    v_lshl_or_b32 v{GL}, v{GL}, 16, v{T2}
    v_lshlrev_b32 v{QQ}, 2, v{QQ}
    v_add_u32 v{QQ}, {L_SLOT}, v{QQ}
    s_and_b64 s[56:57], s[56:57], s[54:55]
    s_or_b64 s[52:53], s[52:53], s[56:57]
    s_mov_b64 exec, s[54:55]
    ds_write2st64_b32 v6, v{T1}, v{G0} offset0:4 offset1:8
    ds_write_b32 v{QQ}, v{T3}
    s_and_b64 exec, exec, s[46:47]
    ds_write_b32 v{QQ}, v{GL} offset:4
    s_mov_b64 exec, s[52:53]
    v_mov_b32 v{T1}, {L_FLAG}
    ds_write_b32 v{T1}, v13
    s_mov_b64 exec, -1""")
    A("\n".join(wrd[42:54]))
    A(f"""v_and_b32 v7, 31, v0
    v_bfe_u32 v8, v0, 5, 1
    s_lshl_b32 s46, s{S_W}, 7
    s_add_u32 s47, s46, {L_SLOT}
    s_sub_u32 s49, {L_SLOT + 7*128}, s46
    v_lshl_add_u32 v9, v7, 2, s47
    v_lshl_add_u32 v10, v7, 2, s49
    v_mov_b32 v11, {L_FLAG}
    s_waitcnt lgkmcnt(0)
    s_barrier
    ;@stamp 6
    ds_read_b32 v11, v11
    ds_read_b32 v{SI}, v9
    ds_read_b32 v{VT}, v10""")
    for j in range(CAP):
        A(f"v_cmpx_lt_u32 vcc, {j}, v2")
        if j % 4 == 0 and j >= 12: A("s_cbranch_execz k2_ni_done")
        A(f"ds_read2st64_b32 v[{NI+2*j}:{NI+2*j+1}], v{RA_+j} offset0:4 offset1:8\nv_and_b32 v{RK+j}, 0x1ffff, v{RK+j}")
    A(f"""k2_ni_done:
    s_mov_b64 exec, -1
    s_mul_i32 s46, s{S_W}, {TABW}
    s_add_u32 s46, s46, {L_TAB}
    v_lshl_add_u32 v9, v7, 3, s46
    v_lshlrev_b32 v5, 4, v8
    s_waitcnt lgkmcnt(0)
    v_readfirstlane_b32 s47, v11
    v_and_b32 v4, 0xffff, v{SI}
    v_readfirstlane_b32 s{S_THR}, v{SI}
    v_readfirstlane_b32 s{S_END}, v{VT}
    s_cmp_lg_u32 s47, 0
    s_cbranch_scc1 k2_slow
    ds_write_b32 v9, v{VT} offset:{CA*256}""")
    for s in range(4):
        A(f"buffer_load_dwordx4 a[{AB[0]+4*s}:{AB[0]+4*s+3}], v[4:5], s[{SX}:{SX+3}], s{S_XO[0]} idxen offen offset:{32*s}")
    for j0 in range(0, CAP, 4):
        if j0 >= 12: A(f"v_cmpx_lt_u32 vcc, {j0}, v2\ns_cbranch_execz k2_sc_done")
        for j in range(j0, j0+4): A(f"v_dot2_i32_i16 v{RA_+j}, v{RK+j}, v{NI+2*j+1}, v{NI+2*j}")
        for j in range(j0, j0+4): A(f"v_cmpx_lt_u32 vcc, {j}, v2\nds_write_b64 v{RA_+j}, v[{REC+2*j}:{REC+2*j+1}]")
    A(f"""k2_sc_done:
    s_mov_b64 exec, -1
    s_lshr_b32 s{S_THR}, s{S_THR}, 24
    s_max_u32 s{S_THR}, s{S_THR}, 1
    s_sub_u32 s47, {CA}, s{S_THR}
    s_lshl_b32 s{S_THR}, s{S_THR}, 24
    s_and_b32 s{S_END}, s{S_END}, 0xff000000
    s_max_u32 s{S_END}, s{S_END}, 0x01000000
    s_and_b32 s56, s47, 3
    s_andn2_b32 s57, s47, 3
    s_lshl_b32 s57, s57, 8
    s_add_u32 s57, s57, s46
    s_lshl_b32 s58, s56, 8
    v_lshlrev_b32 v9, 8, v8
    v_add_u32 v9, {L_B1}, v9
    v_lshrrev_b32 v10, 4, v3
    v_xor_b32 v11, v3, v10
    v_and_b32 v11, 1, v11
    v_and_b32 v12, 6, v3
    v_or_b32 v12, v12, v11
    v_lshlrev_b32 v{EE+15}, 4, v12
    v_lshlrev_b32 v{EE+14}, 4, v11
    v_lshrrev_b32 v{TAX}, 3, v3
    v_lshl_add_u32 v{TAX}, v{TAX}, 3, s57
    v_lshrrev_b32 v{TAE}, 1, v3
    v_lshl_add_u32 v{TAE}, v{TAE}, 3, s57
    v_lshrrev_b32 v12, 3, v7
    v_xor_b32 v13, v12, v8
    v_and_b32 v13, 1, v13
    v_lshlrev_b32 v13, 4, v13
    v_lshl_add_u32 v13, v7, 5, v13
    v_add_u32 v{RAE}, s{S_RING}, v13
    v_lshlrev_b32 v12, 5, v12
    v_lshl_add_u32 v12, v7, 7, v12
    v_lshrrev_b32 v7, 1, v7
    v_xor_b32 v7, v7, v8
    v_and_b32 v7, 1, v7
    v_lshl_add_u32 v12, v7, 4, v12
    v_add_u32 v{RAX}, s{S_RING}, v12
    s_waitcnt lgkmcnt(0)""")
    A("\n".join(bias_reads(9)))
    A(f"""v_add_u32 v{EE+13}, s58, v{TAX}
    v_add_u32 v{EE+12}, s58, v{TAE}""")
    for j in range(4): A(f"v_mov_b32 v{XI[j]+1}, v{EE+15}")
    A(f"v_mov_b32 v{EI+1}, v{EE+14}")
    PT = D[0]
    for k in range(4):
        for j in range(4): A(f"v_mov_b32 v{PT+10*k+2*j+1}, v{EE+15}")
        A(f"v_mov_b32 v{PT+10*k+9}, v{EE+14}")
    A("s_barrier\n;@stamp 7")
    for k in range(5):
        for j in range(4): A(f"ds_read_u16 v{PT+10*k+2*j if k < 4 else XI[j]}, v{EE+13} offset:{256*k+64*j}")
        A(f"ds_read_b32 v{PT+10*k+8 if k < 4 else EI}, v{EE+12} offset:{256*k+4}")
    so = [f"s{S_XO[0]}", f"s{S_XO[1]}", f"s{S_XO[2]}", "0"]
    for k in range(4):
        A(f"""s_add_u32 s59, s56, {k}
        s_and_b32 s59, s59, 3
        s_mul_i32 s59, s59, {SLOT}
        s_add_u32 m0, s59, s{S_RING}
        s_waitcnt lgkmcnt({min(15, 20-5*k)})""")
        for j in range(4):
            A(f"buffer_load_dwordx4 v[{PT+10*k+2*j}:{PT+10*k+2*j+1}], s[{SX}:{SX+3}], {so[j]} idxen offen offset:{XBLK*j} lds")
        A(f"s_add_u32 m0, m0, {XTILE}\ns_nop 0")
        A(f"buffer_load_dwordx4 v[{PT+10*k+8}:{PT+10*k+9}], s[{SE}:{SE+3}], 0 idxen offen {ent} lds")
    A("s_waitcnt vmcnt(20) lgkmcnt(0)")
    B = Blk()
    weave(B, [f"v_mov_b32 v{NUM+i}, 0" for i in range(64)] + [f"v_mov_b32 v{DEN+i}, 1.0" for i in range(64)],
          [mfma(Q+16*t, AW1B + 16*t + 4*s, AB[0] + 4*s, Q+16*t) for t in range(4) for s in range(4)])
    A("\n".join(B.l))
    A(""";@stamp 8
    s_waitcnt vmcnt(15)
    ;@stamp 9
    s_cmp_eq_u32 s56, 1
    s_cbranch_scc1 k2_in1
    s_cmp_eq_u32 s56, 2
    s_cbranch_scc1 k2_in2
    s_cmp_eq_u32 s56, 3
    s_cbranch_scc1 k2_in3""")
    for ph in (0, 1, 2, 3):
        nb = AB[ph & 1]
        if ph: A(f"k2_in{ph}:")
        for s in range(4): A(f"ds_read_b128 a[{nb+4*s}:{nb+4*s+3}], v{RAX} offset:{ph*SLOT+32*s}")
        A(f"ds_read_b128 a[{nb+16}:{nb+19}], v{RAE} offset:{ph*SLOT+XTILE}")
        for s in range(5):
            A(f"s_waitcnt lgkmcnt({4-s})")
            A(mfma(D[0], AW1 + 4*s, nb + 4*s, Q if s == 0 else D[0]))
        A(f"s_nop 12\ns_branch k2_la{ph}")
    B = Blk()
    B(".p2align 6")
    for ph in range(4):
        B(f"k2_la{ph}:")
        row(B, ph, "m", ent, head=[f"v_cmp_le_u32 s[{S_M}:{S_M+1}], s{S_THR}, v{SI}"],
            tail=[f"s_sub_u32 s{S_THR}, s{S_THR}, 0x01000000"] + ([f"s_cmp_lg_u32 s{S_THR}, 0"] if ph == 3 else []))
    B("s_cbranch_scc1 k2_la0\n;@stamp 10")
    flush(B, True, ent)
    B(";@stamp 11")
    row(B, 1, "f", ent, tail=[f"s_mov_b32 s{S_THR}, 0x01000000"])
    B(f"""v_cmp_gt_u32 vcc, s{S_THR}, v{SI}
    s_cbranch_vccnz k2_fix0
    k2_fix0_back:
    s_cmp_eq_u32 s{S_THR}, s{S_END}
    s_cbranch_scc1 k2_fin""")
    for ph in (2, 3, 0, 1):
        B(f"k2_lb{ph}:")
        row(B, ph, "m", ent, head=[f"s_add_u32 s{S_THR}, s{S_THR}, 0x01000000", f"v_cmp_le_u32 s[{S_M}:{S_M+1}], s{S_THR}, v{SI}"],
            tail=[f"s_cmp_eq_u32 s{S_THR}, s{S_END}"])
        B("s_cbranch_scc1 k2_fin" if ph != 1 else "s_cbranch_scc0 k2_lb2")
    B("k2_fin:\n;@stamp 12")
    flush(B, False, ent)
    A("\n".join(B.l))
    A(f""";@stamp 13
    ;@dump 1 s{S_W} 14
    v_mov_b32 v16, {L_FLAG}
    s_mov_b64 exec, s[52:53]
    ds_write_b32 v16, v16
    s_mov_b64 exec, -1
    s_waitcnt lgkmcnt(0)
    s_barrier
    ds_read_b32 v17, v16
    s_waitcnt lgkmcnt(0)
    v_readfirstlane_b32 s47, v17
    s_cmp_lg_u32 s47, 0
    s_cbranch_scc1 k2_slow
k2_done:
    s_endpgm
k2_fix0:
    s_mov_b64 exec, vcc""")
    for i in range(64): A(f"v_mov_b32 v{NUM+i}, 0\nv_mov_b32 v{DEN+i}, 1.0")
    A("s_mov_b64 exec, -1\ns_branch k2_fix0_back")
    gen_slow(A)
    return descriptor(name, 512, 72, 256)

def gen_slow(A):
    ST = 272
    XS, XD, EB, Z, T, H, O = 16, 32, 48, Q, 64, 80, D[0]
    A(f"""k2_slow:
    s_waitcnt vmcnt(0) lgkmcnt(0)
    s_barrier
    v_mbcnt_lo_u32_b32 v3, -1, 0
    v_mbcnt_hi_u32_b32 v3, -1, v3
    s_lshl_b32 s46, s{S_W}, 6
    v_add_u32 v0, s46, v3
    v_and_b32 v7, 31, v3
    v_lshrrev_b32 v8, 5, v3
    v_lshlrev_b32 v1, 4, v0
    v_mov_b32 v16, 0
    v_mov_b32 v17, 0
    v_mov_b32 v18, 0
    v_mov_b32 v19, 0""")
    for j in range(14): A(f"ds_write_b128 v1, v[16:19] offset:{4096*j}")
    A(f"""v_lshlrev_b32 v9, 8, v8
    v_add_u32 v9, {L_B1}, v9
    v_lshlrev_b32 v5, 4, v8
    v_mov_b32 v11, v5
    v_mov_b32 v13, v5
    v_mov_b32 v112, 0x3f803f80
    v_mov_b32 v113, 0
    v_mov_b32 v114, 0
    v_mov_b32 v115, 0
    s_mov_b32 s60, s{S_W}
    s_waitcnt lgkmcnt(0)
    s_barrier
k2_s_chunk:
    s_lshl_b32 s61, s60, 10
    s_lshl_b32 s62, s{S_B}, 2
    s_add_u32 s61, s61, s62
    s_add_u32 s61, s61, {WS_OFFS}
    s_load_dword s62, s[{SW}:{SW+1}], s61
    s_mul_i32 s63, s60, {CH}
    s_waitcnt lgkmcnt(0)
    s_and_b32 s61, s62, 0xffff
    s_lshr_b32 s62, s62, 16
    s_add_u32 s63, s63, s61
k2_s_tile:
    s_cmp_lt_i32 s62, 1
    s_cbranch_scc1 k2_s_next
    v_add_lshl_u32 v1, v7, s63, 3
    buffer_load_dwordx2 v[14:15], v1, s[{SR}:{SR+3}], 0 offen""")
    A("\n".join(bias_reads(9)))
    A(f"""v_cmp_gt_u32 s[40:41], s62, v7
    s_waitcnt vmcnt(0)
    v_and_b32 v4, 0xffff, v14
    v_lshrrev_b32 v10, 16, v14
    v_mov_b32 v12, v15""")
    for s in range(4):
        A(f"buffer_load_dwordx4 v[{XS+4*s}:{XS+4*s+3}], v[4:5], s[{SX}:{SX+3}], s{S_XO[0]} idxen offen offset:{32*s}")
        A(f"buffer_load_dwordx4 v[{XD+4*s}:{XD+4*s+3}], v[10:11], s[{SX}:{SX+3}], s{S_XO[0]} idxen offen offset:{32*s}")
    A(f"""buffer_load_dwordx4 v[{EB}:{EB+3}], v[12:13], s[{SE}:{SE+3}], 0 idxen offen
    v_subrev_u32 v2, s{S_START}, v10
    v_mul_u32_u24 v2, {ST}, v2
    v_lshl_add_u32 v2, v8, 7, v2
    s_waitcnt vmcnt(0) lgkmcnt(0)""")
    for t in range(4):
        for s in range(4): A(mfma(Z+16*t, AW1+20*t+4*s, XS+4*s, Z+16*t, bp="v"))
        A(mfma(Z+16*t, AW1+20*t+16, EB, Z+16*t, bp="v"))
        for s in range(4): A(mfma(Z+16*t, AW1B+16*t+4*s, XD+4*s, Z+16*t, bp="v"))
    for g in range(2): A(mfma(O+16*g, AB2+4*g, 112, None, bp="v"))
    A("s_nop 15")
    for t in range(4):
        for i in range(16): A(f"v_exp_f32 v{T+i}, v{Z+16*t+i}")
        for i in range(16): A(f"v_add_f32 v{T+i}, 1.0, v{T+i}")
        for i in range(16): A(f"v_rcp_f32 v{T+i}, v{T+i}")
        for i in range(16): A(f"v_mul_f32 v{T+i}, v{Z+16*t+i}, v{T+i}")
        for i in range(0, 16, 2): A(f"v_cvt_pk_bf16_f32 v{H+8*t+i//2}, v{T+i}, v{T+i+1}")
    A("s_nop 1")
    for tu in range(8):
        for g in range(2): A(mfma(O+16*g, AW2+4*(2*tu+g), H+4*tu, O+16*g, bp="v"))
    A("s_nop 15")
    for i in range(32): A(f"v_mul_f32 v{O+i}, s{S_LN2}, v{O+i}")
    A("s_mov_b64 exec, s[40:41]")
    for i in range(32): A(f"ds_add_f32 v2, v{O+i} offset:{4*i}")
    A(f"""s_mov_b64 exec, -1
    s_waitcnt lgkmcnt(0)
    s_sub_u32 s62, s62, 32
    s_add_u32 s63, s63, 32
    s_branch k2_s_tile
k2_s_next:
    s_add_u32 s60, s60, 4
    s_cmp_lt_u32 s60, {NCH}
    s_cbranch_scc1 k2_s_chunk
    s_barrier
    v_lshrrev_b32 v1, 3, v0
    v_and_b32 v2, 7, v0
    v_mul_u32_u24 v4, {ST}, v1
    v_lshl_add_u32 v4, v2, 5, v4
    v_add_u32 v6, s{S_START}, v1
    v_lshlrev_b32 v6, 7, v6
    v_lshl_add_u32 v6, v2, 4, v6""")
    for p in range(7):
        A(f"""ds_read_b128 v[16:19], v4 offset:{p*32*ST}
        ds_read_b128 v[20:23], v4 offset:{p*32*ST+16}
        v_cmp_gt_u32 vcc, s{S_NN}, v1
        v_cndmask_b32 v28, -1, v6, vcc
        v_add_u32 v1, 32, v1
        v_add_u32 v6, 4096, v6
        s_waitcnt lgkmcnt(0)
        v_cvt_pk_bf16_f32 v24, v16, v17
        v_cvt_pk_bf16_f32 v25, v18, v19
        v_cvt_pk_bf16_f32 v26, v20, v21
        v_cvt_pk_bf16_f32 v27, v22, v23
        buffer_store_dwordx4 v[24:27], v28, s[{SO}:{SO+3}], 0 offen
        s_waitcnt vmcnt(0)""".replace("v_cndmask_b32 v28", "s_nop 1\nv_cndmask_b32 v28"))
    A("s_endpgm")

def build(**kw):
    A = Asm()
    A('.amdgcn_target "amdgcn-amd-amdhsa--gfx950"\n.text')
    d1 = gen_k1(A, stflag=kw.get("stflag", ""))
    d2 = gen_k2(A, ent=kw.get("ent", "nt"))
    hdr = HEADER + f"""; @launch kernel=bin_kernel grid=(256,1,1) block=(832,1,1) lds={K1_LDS}
; @launch kernel=mpnn_kernel grid=(256,1,1) block=(256,1,1) lds={K2_LDS}
"""
    return hdr + A.text() + '.section .rodata,"a"\n' + d1 + d2

if __name__ == "__main__":
    import sys
    open(sys.argv[1] if len(sys.argv) > 1 else "v1.s", "w").write(build())
```
